```python
import torch

def _softmax(x, axis=-1):
    return torch.softmax(x, dim=axis)
def _gelu(x):
    return torch.nn.functional.gelu(x, approximate="tanh")
def _silu(x):
    return torch.nn.functional.silu(x)
def _sigmoid(x):
    return torch.sigmoid(x)
def _layernorm(x, axis=-1, eps=1e-5):
    m = x.mean(dim=axis, keepdim=True)
    v = x.var(dim=axis, keepdim=True, unbiased=False)
    return (x - m) / torch.sqrt(v + eps)
def _scatter_add(tgt, idx, src, axis=0):
    return tgt.clone().index_add_(axis, idx, src)
def _segment_sum(src, seg, n):
    out = torch.zeros((n,) + src.shape[1:], dtype=src.dtype)
    return out.index_add_(0, seg, src)
def _pad(x, pw):
    flat = tuple(v for pair in reversed(pw) for v in pair)
    return torch.nn.functional.pad(x, flat)

kernel_name = 'recurrent_scan__ssm_conv_s5__dense_activation_squared_relu__prompt'

def setup_inputs():

    _w = (lambda a: (lambda t: t.to(torch.bfloat16) if t.is_floating_point() else t)(torch.as_tensor(a)))
    def _A_setup():
        B, S, D = 1, 2048, 640
        P = D
        Lambda_re = -0.5 * (lambda _x: torch.exp(torch.as_tensor(_x)))((lambda *s: torch.randn(*s, dtype=torch.bfloat16) * 0.2)(P))
        Lambda_im = (lambda *s: torch.randn(*s, dtype=torch.bfloat16) * 0.4)(P) * 1.0
        B_re = (lambda *s: torch.randn(*s, dtype=torch.bfloat16) * 0.2)(P, D) * (D ** -0.5)
        B_im = (lambda *s: torch.randn(*s, dtype=torch.bfloat16) * 0.2)(P, D) * (D ** -0.5)
        C_re = (lambda *s: torch.randn(*s, dtype=torch.bfloat16) * 0.2)(D, P) * (P ** -0.5)
        C_im = (lambda *s: torch.randn(*s, dtype=torch.bfloat16) * 0.2)(D, P) * (P ** -0.5)
        log_dt = (lambda *s: torch.randn(*s, dtype=torch.bfloat16) * 0.2)(P) * 0.3 - 2.0
        Dskip = (lambda *s: torch.randn(*s, dtype=torch.bfloat16) * 0.05)(D)
        return {
            "x": _w((lambda *s: torch.randn(*s, dtype=torch.bfloat16) * 0.05)(B, S, D)),
            "Lambda_re": _w(Lambda_re),
            "Lambda_im": _w(Lambda_im),
            "B_re": _w(B_re),
            "B_im": _w(B_im),
            "C_re": _w(C_re),
            "C_im": _w(C_im),
            "log_dt": _w(log_dt),
            "Dskip": _w(Dskip),
        }
    _A_in = _A_setup()

    def _B_setup():
        B, S, D, F = 1, 2048, 640, 1536
        return {
            "x": _w((lambda *s: torch.randn(*s, dtype=torch.bfloat16) * 0.05)(B, S, D)),
            "w1": _w((lambda *s: torch.randn(*s, dtype=torch.bfloat16) * 0.05)(D, F)),
            "b1": _w((lambda *s: torch.randn(*s, dtype=torch.bfloat16) * 0.4)(F)),
            "w2": _w((lambda *s: torch.randn(*s, dtype=torch.bfloat16) * 0.05)(F, D)),
            "b2": _w((lambda *s: torch.randn(*s, dtype=torch.bfloat16) * 1.6)(D)),
        }
    _B_in = _B_setup()

    return {
        "A_x": _A_in["x"],
        "A_Lambda_re": _A_in["Lambda_re"],
        "A_Lambda_im": _A_in["Lambda_im"],
        "A_B_re": _A_in["B_re"],
        "A_B_im": _A_in["B_im"],
        "A_C_re": _A_in["C_re"],
        "A_C_im": _A_in["C_im"],
        "A_log_dt": _A_in["log_dt"],
        "A_Dskip": _A_in["Dskip"],
        "B_x": _B_in["x"],
        "B_w1": _B_in["w1"],
        "B_b1": _B_in["b1"],
        "B_w2": _B_in["w2"],
        "B_b2": _B_in["b2"],
    }

def reference(A_x, A_Lambda_re, A_Lambda_im, A_B_re, A_B_im, A_C_re, A_C_im, A_log_dt, A_Dskip, B_x, B_w1, B_b1, B_w2, B_b2):
    def _A_ref(x, Lambda_re, Lambda_im, B_re, B_im, C_re, C_im, log_dt, Dskip):
        Bsz, L, H = x.shape
        Lam = Lambda_re + 1j * Lambda_im
        Bmat = B_re + 1j * B_im
        Cmat = C_re + 1j * C_im
        dt = torch.exp(log_dt)
        Lam_bar = torch.exp(dt * Lam)
        B_bar = ((Lam_bar - 1.0) / Lam)[:, None] * Bmat
        Bu = torch.einsum("bld,pd->blp", x + 0j, B_bar)
        h = torch.zeros_like(Bu[:, 0, :])
        hs = []
        for t in range(L):
            h = Lam_bar[None, :] * h + Bu[:, t, :]
            hs.append(h)
        hseq = torch.stack(hs, 1)
        y = 2.0 * torch.einsum("blp,dp->bld", hseq, Cmat).real + x * Dskip[None, None, :]
        return y

    def _B_ref(x, w1, b1, w2, b2):
        h = torch.einsum("bsd,df->bsf", x, w1) + b1
        zero = torch.zeros_like(h)
        r = torch.where(h > zero, h, zero)
        h = r * r
        out = torch.einsum("bsf,fd->bsd", h, w2) + b2
        return out

    x = A_x
    xn = _layernorm(x, axis=-1)
    s = _A_ref(xn, A_Lambda_re, A_Lambda_im, A_B_re, A_B_im, A_C_re, A_C_im, A_log_dt, A_Dskip)
    g = _silu(_B_ref(xn, B_w1, B_b1, B_w2, B_b2))
    return x + s * g
```

```python
import os
NAME = "recurrent_scan__ssm_conv_s5__dense_activation_squared_relu__prompt"
HEADER = open(os.path.join(os.path.dirname(os.path.abspath(__file__)), "header.txt")).read()
HEADER = "\n".join(l for l in HEADER.splitlines() if not l.startswith("; Override")) + "\n"

OFF = dict(x=0, lre=8, lim=16, bre=24, bim=32, cre=40, cim=48, ldt=56, dsk=64, bx=72,
           w1=80, b1=88, w2=96, b2=104, out=112, dbg=120, ws=128)

class Asm:
    def __init__(self):
        self.l = []
        self.uid = 0
    def __call__(self, s=""):
        for line in s.split("\n"):
            self.l.append(line)
    def lab(self, prefix="L"):
        self.uid += 1
        return f"{prefix}_{self.uid}"
    def text(self):
        return "\n".join(self.l) + "\n"

def kernel_begin(a, label):
    a(f".globl {label}")
    a(".p2align 8")
    a(f".type {label},@function")
    a(f"{label}:")

def kernel_desc(a, label, vgpr, sgpr=102, accum=None, wgy=False):
    if accum is None:
        accum = (vgpr + 3)//4*4
    a(".p2align 6")
    a(f".amdhsa_kernel {label}")
    a(f"  .amdhsa_next_free_vgpr {vgpr}")
    a(f"  .amdhsa_next_free_sgpr {sgpr}")
    a(f"  .amdhsa_accum_offset {accum}")
    a("  .amdhsa_group_segment_fixed_size 0")
    a("  .amdhsa_kernarg_size 136")
    a("  .amdhsa_user_sgpr_count 2")
    a("  .amdhsa_user_sgpr_kernarg_segment_ptr 1")
    a("  .amdhsa_system_sgpr_workgroup_id_x 1")
    a("  .amdhsa_float_denorm_mode_32 3")
    a(".end_amdhsa_kernel")

def assemble_file(launches, body_text, descs_text):
    s = HEADER
    if len(launches) == 1 and launches[0][0] == NAME + "_kernel":
        _, g, b, lds = launches[0]
        s += f"; @launch grid=({g[0]},{g[1]},{g[2]}) block=({b[0]},{b[1]},{b[2]}) lds={lds}\n"
    else:
        for lab, g, b, lds in launches:
            s += f"; @launch kernel={lab} grid=({g[0]},{g[1]},{g[2]}) block=({b[0]},{b[1]},{b[2]}) lds={lds}\n"
    s += '.amdgcn_target "amdgcn-amd-amdhsa--gfx950"\n.text\n'
    s += body_text
    s += '.section .rodata,"a"\n'
    s += descs_text
    return s
```

```python
import sys
from asmlib import *

XN=0; BU=0x400000; HH=0x1000000; R2=0x2000000

def ld_ptr(a, sreg, name):
    a(f"s_load_dwordx2 s[{sreg}:{sreg+1}], s[0:1], {OFF[name]}")

def rbf(a, v, tmp=None):
    a(f"v_cvt_pk_bf16_f32 {v}, {v}, {v}")
    a(f"v_lshlrev_b32 {v}, 16, {v}")

def wave_sum(a, v, t):
    for mod in ["quad_perm:[1,0,3,2]", "quad_perm:[2,3,0,1]", "row_half_mirror", "row_mirror"]:
        a("s_nop 1")
        a(f"v_add_f32_dpp {v}, {v}, {v} {mod} row_mask:0xf bank_mask:0xf")
    a("s_nop 1")
    a(f"v_readlane_b32 s20, {v}, 0")
    a(f"v_readlane_b32 s21, {v}, 16")
    a(f"v_readlane_b32 s22, {v}, 32")
    a(f"v_readlane_b32 s23, {v}, 48")
    a("s_nop 3")
    a(f"v_mov_b32 {v}, s20")
    a(f"v_add_f32 {v}, s21, {v}")
    a(f"v_add_f32 {v}, s22, {v}")
    a(f"v_add_f32 {v}, s23, {v}")

def k_ln(a, mimic):
    kernel_begin(a, "ln_kernel")
    a("s_cmp_ge_u32 s2, 2048\ns_cbranch_scc1 ln_done")
    ld_ptr(a, 4, "x"); ld_ptr(a, 6, "ws")
    a("s_mul_i32 s3, s2, 1280")
    a("v_lshlrev_b32 v1, 2, v0")
    a("v_add_u32 v1, s3, v1")
    a("s_waitcnt lgkmcnt(0)")
    for i in range(5):
        a(f"global_load_dword v{2+i}, v1, s[4:5] offset:{256*i}")
    a("s_waitcnt vmcnt(0)")
    for i in range(5):
        a(f"v_lshlrev_b32 v{10+2*i}, 16, v{2+i}")
        a(f"v_and_b32 v{11+2*i}, 0xffff0000, v{2+i}")
    a("v_mov_b32 v20, 0")
    for i in range(10): a(f"v_add_f32 v20, v20, v{10+i}")
    wave_sum(a, "v20", None)
    a("v_mul_f32 v20, 0x3acccccd, v20")
    a("v_mov_b32 v21, 0")
    for i in range(10):
        a(f"v_sub_f32 v22, v{10+i}, v20")
        a(f"v_fmac_f32 v21, v22, v22")
    wave_sum(a, "v21", None)
    a("v_mul_f32 v21, 0x3acccccd, v21")
    if mimic:
        rbf(a, "v20"); rbf(a, "v21")
    a("v_add_f32 v21, 0x3727c5ac, v21")
    if mimic: rbf(a, "v21")
    a("v_sqrt_f32 v21, v21")
    a("s_nop 0")
    if mimic: rbf(a, "v21")
    a("v_rcp_f32 v23, v21")
    a("s_nop 0")
    a("v_fma_f32 v24, -v21, v23, 1.0")
    a("v_fma_f32 v23, v24, v23, v23")
    for i in range(10):
        a(f"v_sub_f32 v{10+i}, v{10+i}, v20")
        if mimic: rbf(a, f"v{10+i}")
        a(f"v_mul_f32 v{10+i}, v{10+i}, v23")
    if mimic:
        for i in range(10): rbf(a, f"v{10+i}")
    a("s_mul_i32 s3, s2, 2560")
    a("v_lshlrev_b32 v1, 3, v0")
    a("v_add_u32 v1, s3, v1")
    for i in range(5):
        a(f"global_store_dwordx2 v1, v[{10+2*i}:{11+2*i}], s[6:7] offset:{512*i}")
    a("ln_done:\ns_endpgm")

BU=0x600000; HH=0x1200000; R2=0x2000000

def k_g1(a, mimic):
    kernel_begin(a, "g1_kernel")
    a("s_cmp_ge_u32 s2, 22528\ns_cbranch_scc1 g1_done")
    ld_ptr(a, 4, "bre"); ld_ptr(a, 6, "bim"); ld_ptr(a, 8, "w1"); ld_ptr(a, 10, "ws"); ld_ptr(a, 12, "b1")
    a("s_mov_b32 s14, 0x1745d175")
    a("s_mul_hi_u32 s15, s2, s14")
    a("s_mul_i32 s16, s15, 11")
    a("s_sub_u32 s16, s2, s16")
    a("s_lshl_b32 s16, s16, 8")
    a("v_add_u32 v1, s16, v0")
    a("s_waitcnt lgkmcnt(0)")
    a("v_subrev_u32 v5, 1280, v1")
    a("v_lshlrev_b32 v6, 1, v5")
    a("v_mov_b32 v3, s9")
    a("v_add_co_u32 v2, vcc, s8, v6")
    a("v_addc_co_u32 v3, vcc, 0, v3, vcc")
    a("v_mov_b32 v4, 3072")
    a("v_subrev_u32 v7, 640, v1")
    a("v_mul_u32_u24 v7, 1280, v7")
    a("v_mov_b32 v9, s7")
    a("v_add_co_u32 v8, vcc, s6, v7")
    a("v_addc_co_u32 v9, vcc, 0, v9, vcc")
    a("v_cmp_gt_u32 vcc, 1280, v1")
    a("s_nop 1")
    a("v_cndmask_b32 v2, v2, v8, vcc")
    a("v_cndmask_b32 v3, v3, v9, vcc")
    a("v_cndmask_b32 v4, v4, 2, vcc" if False else "v_mov_b32 v10, 2\nv_cndmask_b32 v4, v4, v10, vcc")
    a("v_mul_u32_u24 v7, 1280, v1")
    a("v_mov_b32 v9, s5")
    a("v_add_co_u32 v8, vcc, s4, v7")
    a("v_addc_co_u32 v9, vcc, 0, v9, vcc")
    a("v_cmp_gt_u32 vcc, 640, v1")
    a("s_nop 1")
    a("v_cndmask_b32 v2, v2, v8, vcc")
    a("v_cndmask_b32 v3, v3, v9, vcc")
    a("s_mul_i32 s17, s15, 2560")
    a("s_add_u32 s18, s10, s17")
    a("s_addc_u32 s19, s11, 0")
    a("v_mov_b32 v11, 0")
    a("s_mov_b32 s20, 0")
    a("g1_loop:")
    a("s_load_dwordx8 s[24:31], s[18:19], 0")
    for j in range(8):
        a(f"global_load_ushort v{12+j}, v[2:3], off")
        a("v_add_co_u32 v2, vcc, v2, v4")
        a("v_addc_co_u32 v3, vcc, 0, v3, vcc")
    a("s_waitcnt vmcnt(0) lgkmcnt(0)")
    for j in range(8):
        a(f"v_lshlrev_b32 v{12+j}, 16, v{12+j}")
        a(f"v_fmac_f32 v11, s{24+j}, v{12+j}")
    a("s_add_u32 s18, s18, 32\ns_addc_u32 s19, s19, 0")
    a("s_add_u32 s20, s20, 8\ns_cmp_lt_u32 s20, 640\ns_cbranch_scc1 g1_loop")
    a("v_cmp_gt_u32 vcc, 1280, v1")
    a("s_and_saveexec_b64 s[22:23], vcc")
    a("s_cbranch_execz g1_ffn")
    a("s_mul_i32 s17, s15, 5120")
    a(f"s_add_u32 s17, s17, {BU}")
    a("v_lshlrev_b32 v6, 2, v1")
    a("v_add_u32 v6, s17, v6")
    a("global_store_dword v6, v11, s[10:11]")
    a("g1_ffn:")
    a("s_andn2_b64 exec, s[22:23], exec")
    a("s_cbranch_execz g1_done")
    a("v_lshlrev_b32 v6, 1, v5")
    a("global_load_ushort v12, v6, s[12:13]")
    a("s_waitcnt vmcnt(0)")
    a("v_lshlrev_b32 v12, 16, v12")
    if mimic: rbf(a, "v11")
    a("v_add_f32 v11, v11, v12")
    if mimic: rbf(a, "v11")
    a("v_max_f32 v11, 0, v11")
    a("v_mul_f32 v11, v11, v11")
    if mimic >= 0: rbf(a, "v11")
    a("s_mul_i32 s17, s15, 6144")
    a(f"s_add_u32 s17, s17, {R2}")
    a("v_lshlrev_b32 v6, 2, v5")
    a("v_add_u32 v6, s17, v6")
    a("global_store_dword v6, v11, s[10:11]")
    a("g1_done:\ns_endpgm")

def k_scan(a, hbf):
    kernel_begin(a, "scan_kernel")
    a("s_cmp_ge_u32 s2, 10\ns_cbranch_scc1 sc_done")
    ld_ptr(a, 4, "lre"); ld_ptr(a, 6, "lim"); ld_ptr(a, 8, "ldt"); ld_ptr(a, 10, "ws")
    a("s_lshl_b32 s3, s2, 6")
    a("v_add_u32 v1, s3, v0")
    a("v_lshlrev_b32 v2, 1, v1")
    a("s_waitcnt lgkmcnt(0)")
    a("global_load_ushort v3, v2, s[4:5]")
    a("global_load_ushort v4, v2, s[6:7]")
    a("global_load_ushort v5, v2, s[8:9]")
    a("s_waitcnt vmcnt(0)")
    a("v_lshlrev_b32 v3, 16, v3\nv_lshlrev_b32 v4, 16, v4\nv_lshlrev_b32 v5, 16, v5")
    a("v_mul_f32 v5, 0x3fb8aa3b, v5\nv_exp_f32 v5, v5\ns_nop 0")
    rbf(a, "v5")
    a("v_mul_f32 v6, v5, v3\nv_mul_f32 v7, v5, v4")
    a("v_mul_f32 v6, 0x3fb8aa3b, v6\nv_exp_f32 v6, v6")
    a("v_mul_f32 v7, 0.15915494, v7")
    a("v_fract_f32 v8, v7")
    a("v_cos_f32 v9, v8\nv_sin_f32 v10, v8\ns_nop 0")
    a("v_mul_f32 v9, v6, v9\nv_mul_f32 v10, v6, v10")
    a("v_add_f32 v11, -1.0, v9")
    a("v_mul_f32 v12, v3, v3\nv_fmac_f32 v12, v4, v4\nv_rcp_f32 v12, v12\ns_nop 0")
    a("v_mul_f32 v13, v11, v3\nv_fmac_f32 v13, v10, v4")
    a("v_mul_f32 v14, v10, v3\nv_fma_f32 v14, -v11, v4, v14")
    a("v_mul_f32 v13, v13, v12\nv_mul_f32 v14, v14, v12")
    a("v_mov_b32 v20, 0\nv_mov_b32 v21, 0")
    a("v_lshlrev_b32 v2, 2, v1")
    a(f"v_add_u32 v22, {BU}, v2")
    a(f"v_add_u32 v23, {HH}, v2")
    a("s_mov_b32 s20, 0")
    a("sc_loop:")
    for j in range(4):
        a(f"v_add_u32 v24, {j*5120}, v22")
        a(f"global_load_dword v{30+2*j}, v24, s[10:11]")
        a(f"global_load_dword v{31+2*j}, v24, s[10:11] offset:2560")
    a("s_waitcnt vmcnt(0)")
    for j in range(4):
        a(f"v_mul_f32 v40, v13, v{30+2*j}\nv_fma_f32 v40, -v14, v{31+2*j}, v40")
        a(f"v_mul_f32 v41, v13, v{31+2*j}\nv_fma_f32 v41, v14, v{30+2*j}, v41")
        a("v_fma_f32 v40, v9, v20, v40\nv_fma_f32 v40, -v10, v21, v40")
        a("v_fma_f32 v41, v9, v21, v41\nv_fma_f32 v41, v10, v20, v41")
        a("v_mov_b32 v20, v40\nv_mov_b32 v21, v41")
        if hbf:
            rbf(a, "v40"); rbf(a, "v41")
        a(f"v_add_u32 v24, {j*5120}, v23")
        a("global_store_dword v24, v40, s[10:11]")
        a("global_store_dword v24, v41, s[10:11] offset:2560")
    a(f"v_add_u32 v22, {4*5120}, v22\nv_add_u32 v23, {4*5120}, v23")
    a("s_add_u32 s20, s20, 4\ns_cmp_lt_u32 s20, 2048\ns_cbranch_scc1 sc_loop")
    a("sc_done:\ns_endpgm")

def k_g2(a, mimic, scale=None):
    kernel_begin(a, "g2_kernel")
    a("s_cmp_ge_u32 s2, 10240\ns_cbranch_scc1 g2_done")
    ld_ptr(a, 4, "cre"); ld_ptr(a, 6, "cim"); ld_ptr(a, 8, "w2"); ld_ptr(a, 10, "ws"); ld_ptr(a, 12, "b2")
    ld_ptr(a, 32, "x"); ld_ptr(a, 34, "dsk"); ld_ptr(a, 36, "out")
    a("s_mov_b32 s14, 0x33333334")
    a("s_mul_hi_u32 s15, s2, s14")
    a("s_mul_i32 s16, s15, 5")
    a("s_sub_u32 s16, s2, s16")
    a("s_lshl_b32 s16, s16, 7")
    a("v_add_u32 v1, s16, v0")
    a("s_waitcnt lgkmcnt(0)")
    a("v_mul_u32_u24 v2, 1280, v1")
    a("s_mul_i32 s17, s15, 5120")
    a(f"s_add_u32 s17, s17, {HH}")
    a("s_add_u32 s18, s10, s17\ns_addc_u32 s19, s11, 0")
    a("v_mov_b32 v11, 0")
    a("s_mov_b32 s20, 0")
    a("g2_loop1:")
    a("s_load_dwordx8 s[24:31], s[18:19], 0")
    a("s_load_dwordx8 s[40:47], s[18:19], 2560")
    a("global_load_dwordx4 v[12:15], v2, s[4:5]")
    a("global_load_dwordx4 v[16:19], v2, s[6:7]")
    a("s_waitcnt vmcnt(0) lgkmcnt(0)")
    for j in range(4):
        a(f"v_lshlrev_b32 v20, 16, v{12+j}\nv_and_b32 v21, 0xffff0000, v{12+j}")
        a(f"v_fmac_f32 v11, s{24+2*j}, v20\nv_fmac_f32 v11, s{25+2*j}, v21")
        a(f"v_lshlrev_b32 v20, 16, v{16+j}\nv_and_b32 v21, 0xffff0000, v{16+j}")
        a(f"v_fma_f32 v11, -s{40+2*j}, v20, v11\nv_fma_f32 v11, -s{41+2*j}, v21, v11")
    a("v_add_u32 v2, 16, v2")
    a("s_add_u32 s18, s18, 32\ns_addc_u32 s19, s19, 0")
    a("s_add_u32 s20, s20, 8\ns_cmp_lt_u32 s20, 640\ns_cbranch_scc1 g2_loop1")
    a("v_add_f32 v11, v11, v11")
    a("v_lshlrev_b32 v2, 1, v1")
    a("s_mul_i32 s17, s15, 6144")
    a(f"s_add_u32 s17, s17, {R2}")
    a("s_add_u32 s18, s10, s17\ns_addc_u32 s19, s11, 0")
    a("v_mov_b32 v22, 0")
    a("s_mov_b32 s20, 0")
    a("g2_loop2:")
    a("s_load_dwordx8 s[24:31], s[18:19], 0")
    for j in range(8):
        a(f"global_load_ushort v{12+j}, v2, s[8:9]")
        a("v_add_u32 v2, 1280, v2")
    a("s_waitcnt vmcnt(0) lgkmcnt(0)")
    for j in range(8):
        a(f"v_lshlrev_b32 v{12+j}, 16, v{12+j}")
        a(f"v_fmac_f32 v22, s{24+j}, v{12+j}")
    a("s_add_u32 s18, s18, 32\ns_addc_u32 s19, s19, 0")
    a("s_add_u32 s20, s20, 8\ns_cmp_lt_u32 s20, 1536\ns_cbranch_scc1 g2_loop2")
    a("v_lshlrev_b32 v2, 1, v1")
    a("global_load_ushort v12, v2, s[12:13]")
    a("global_load_ushort v13, v2, s[34:35]")
    a("s_mul_i32 s17, s15, 1280")
    a("v_add_u32 v3, s17, v2")
    a("global_load_ushort v14, v3, s[32:33]")
    a("s_mul_i32 s17, s15, 2560")
    a("v_lshlrev_b32 v4, 2, v1")
    a("v_add_u32 v4, s17, v4")
    a("global_load_dword v15, v4, s[10:11]")
    a("s_waitcnt vmcnt(0)")
    a("v_lshlrev_b32 v12, 16, v12\nv_lshlrev_b32 v13, 16, v13\nv_lshlrev_b32 v14, 16, v14")
    a("v_mul_f32 v15, v15, v13")
    if mimic: rbf(a, "v15")
    a("v_add_f32 v11, v11, v15")
    if mimic: rbf(a, "v22")
    a("v_add_f32 v22, v22, v12")
    if mimic: rbf(a, "v22")
    a("v_mul_f32 v23, 0xbfb8aa3b, v22\nv_exp_f32 v23, v23\ns_nop 0")
    a("v_add_f32 v23, 1.0, v23\nv_rcp_f32 v23, v23\ns_nop 0")
    a("v_mul_f32 v22, v22, v23")
    if mimic: rbf(a, "v22")
    a("v_fma_f32 v11, v11, v22, v14")
    if scale is not None:
        import struct
        h = struct.unpack("<I", struct.pack("<f", scale))[0]
        a(f"v_mul_f32 v11, {hex(h)}, v11")
    a("global_store_dword v4, v11, s[36:37]")
    a("g2_done:\ns_endpgm")

def build(mimic_ln, hbf, mimic_ffn, scale=None):
    a = Asm()
    k_ln(a, mimic_ln); k_g1(a, mimic_ffn); k_scan(a, hbf); k_g2(a, mimic_ffn, scale)
    d = Asm()
    for k in ["ln_kernel","g1_kernel","scan_kernel","g2_kernel"]:
        kernel_desc(d, k, 64)
    launches = [("ln_kernel",(2048,1,1),(64,1,1),0), ("g1_kernel",(22528,1,1),(256,1,1),0),
                ("scan_kernel",(10,1,1),(64,1,1),0), ("g2_kernel",(10240,1,1),(128,1,1),0)]
    return assemble_file(launches, a.text(), d.text())

if __name__ == "__main__":
    open("naive_full.s","w").write(build(1,0,1))
    open("naive_hbf.s","w").write(build(1,1,1))
    open("naive_nomimic.s","w").write(build(0,1,0))
    open("naive_lnonly.s","w").write(build(1,1,0))
    open("naive_scale101.s","w").write(build(1,0,1,1.01))
    open("naive_scale102.s","w").write(build(1,0,1,1.02))
```

```python
from asmlib import *
K = NAME + "_kernel"
WS_NONCE=0x0; WS_F0=0x1000; WS_STATS=0x2000; WS_CSS=0x6000; WS_CSG=0x8000; WS_EG=0x20000
WS_F1=0x48000; WS_CREP=0x100000; WS_T=0x300000; WS_X=0x1000000; WS_DBG=0x4000000
SLOT=40960
L_W0=122880
L_ESEG=148480
L_CSST=122880
L_TAB=153600
L_TT=L_TAB
L_TZ=L_TT+2048
L_WT=L_TAB+2304
L_ST=L_WT+3072
L_A16=L_ST+1024
L_RS=L_A16+1280
L_END=L_RS+512
assert L_END <= 163840
P2SLOT=[122880,0,40960,81920]
L_TR=81920
sWG=2; sW=3; sBR=4; sR=5; sCG=6; sTG=7; sCH=8; sKK=9; sDQ=10; sNONCE=11
SRD_WS=12; SRD_X=16; SRD_A=20; SRD_B=24; SRD_C=28; SRD_O=32
pX=36; pLRE=38; pLIM=40; pBRE=42; pBIM=44; pCRE=46; pCIM=48; pLDT=50; pDSK=52; pBX=54; pW1=56; pB1=58; pW2=60; pB2=62; pOUT=64; pDBG=66; pWS=68
SZ_X=2048*1280; SZ_BC=640*1280; SZ_W1=640*3072; SZ_W2=1536*1280; SZ_OUT=2048*2560; SZ_WS=0x10000000
def srd(a, d, p, size):
    a(f"s_mov_b32 s{d}, s{p}\ns_mov_b32 s{d+1}, s{p+1}\ns_mov_b32 s{d+2}, {size}\ns_mov_b32 s{d+3}, 0x20000")
def S(d): return f"s[{d}:{d+3}]"
def V(b, n): return f"v[{b}:{b+n-1}]" if n > 1 else f"v{b}"
def wave_reduce(a, regs):
    for ctl in ["row_shr:1 row_mask:0xf bank_mask:0xf bound_ctrl:1","row_shr:2 row_mask:0xf bank_mask:0xf bound_ctrl:1",
                "row_shr:4 row_mask:0xf bank_mask:0xf bound_ctrl:1","row_shr:8 row_mask:0xf bank_mask:0xf bound_ctrl:1",
                "row_bcast:15 row_mask:0xa bank_mask:0xf","row_bcast:31 row_mask:0xc bank_mask:0xf"]:
        for r in regs:
            a(f"v_add_f32_dpp v{r}, v{r}, v{r} {ctl}")
```

```python
from gp_common import *
from gp_stage1 import KC
FA=16; FB=32; ACC1=48
AX=4
AW=8
sIT=70; sSL=71; sDL=72; sT=73; sT2=74
MF="v_mfma_f32_32x32x16_bf16"
def pi_lane(a, dst, t):
    a(f"v_and_b32 v{dst}, 3, v0\nv_bfe_u32 v{t}, v0, 2, 1\nv_lshl_add_u32 v{dst}, v{t}, 4, v{dst}\nv_bfe_u32 v{t}, v0, 3, 2\nv_lshl_add_u32 v{dst}, v{t}, 2, v{dst}")
def p1_init(a, G):
    if G: a("v_and_b32 v12, 31, v0")
    else: pi_lane(a, 12, 13)
    a(f"v_bfe_u32 v13, v12, 1, 3")
    a(f"s_lshl_b32 s{sT}, s{sTG}, 5\nv_add_u32 v12, s{sT}, v12\nv_lshlrev_b32 v12, 7, v12")
    a(f"v_lshrrev_b32 v14, 5, v0\nv_xor_b32 v13, v13, v14\nv_lshl_add_u32 v12, v13, 4, v12")
    a(f"v_add_u32 v{AX}, {2*SLOT}, v12")
    for ks in range(1, 4): a(f"v_xor_b32 v{AX+ks}, {32*ks}, v{AX}")
    if G:
        a("v_bfe_u32 v12, v0, 2, 2\nv_lshrrev_b32 v13, 5, v0\nv_lshl_add_u32 v13, v13, 3, v12\nv_mul_u32_u24 v13, 384, v13")
        a("v_bfe_u32 v14, v0, 4, 1\nv_lshl_add_u32 v13, v14, 5, v13\nv_and_b32 v14, 3, v0\nv_lshl_add_u32 v13, v14, 3, v13")
        a(f"v_add_u32 v13, {2*SLOT+16384}, v13")
        a("v_bfe_u32 v14, v0, 3, 1")
        for st in range(3):
            a(f"s_mul_i32 s{sT}, s{sCH}, 3\ns_add_u32 s{sT}, s{sT}, {st}")
            a(f"v_xor_b32 v15, s{sT}, v14\nv_lshl_add_u32 v{AW+st}, v15, 6, v13")
    else:
        a("v_bfe_u32 v12, v0, 1, 3\nv_and_b32 v13, 1, v0\nv_lshl_add_u32 v12, v13, 3, v12\nv_bfe_u32 v13, v0, 4, 1\nv_lshl_add_u32 v12, v13, 4, v12")
        a("v_bfe_u32 v13, v12, 1, 3\nv_lshrrev_b32 v14, 5, v0\nv_xor_b32 v13, v13, v14\nv_lshlrev_b32 v12, 7, v12\nv_lshl_add_u32 v12, v13, 4, v12")
        a(f"s_mul_i32 s{sT}, s{sCH}, {3*4096}\ns_add_u32 s{sT}, s{sT}, {2*SLOT+16384}\nv_add_u32 v{AW}, s{sT}, v12")
        for ks in range(1, 4): a(f"v_xor_b32 v{AW+ks}, {32*ks}, v{AW}")
    for i in range(48): a(f"v_mov_b32 v{ACC1+i}, 0")
def p1_reads(G, NS, ks, fs):
    r = [f"ds_read_b128 {V(fs,4)}, v{AX+ks}"]
    for st in range(NS):
        if G:
            r.append(f"ds_read_b64_tr_b16 {V(fs+4+4*st,2)}, v{AW+st} offset:{ks*6144}")
            r.append(f"ds_read_b64_tr_b16 {V(fs+6+4*st,2)}, v{AW+st} offset:{ks*6144+1536}")
        else:
            r.append(f"ds_read_b128 {V(fs+4+4*st,4)}, v{AW+ks} offset:{4096*st}")
    return r
def p1_mfma(G, st, fs):
    acc = V(ACC1+16*st, 16)
    if G: return f"{MF} {acc}, {V(fs+4+4*st,4)}, {V(fs,4)}, {acc}"
    return f"{MF} {acc}, {V(fs,4)}, {V(fs+4+4*st,4)}, {acc}"
def interleave(a, mf, reads):
    n = len(mf); per = -(-len(reads)//max(1, n-1)) if n > 1 else len(reads)
    k = 0
    for i, m in enumerate(mf):
        a(m)
        if i < n-1 or n == 1:
            for r in reads[k:k+per]: a(r)
            k += per
    for r in reads[k:]: a(r)
def p1_loop(a, G, NS, tag, barpos=1):
    nadr = 7 if G else 8
    adr = [AX+i for i in range(4)] + [AW+i for i in range(3 if G else 4)]
    a("s_waitcnt lgkmcnt(0)\ns_barrier")
    for r in p1_reads(G, NS, 0, FA): a(r)
    a(f"s_mov_b32 s{sIT}, 0\ns_mov_b32 s{sSL}, 2")
    a(f"L_P1_{tag}:")
    sets = [FA, FB]
    for ks in range(3):
        a("s_waitcnt lgkmcnt(0)")
        rd = p1_reads(G, NS, ks+1, sets[(ks+1) & 1])
        interleave(a, [p1_mfma(G, st, sets[ks & 1]) for st in range(NS)], rd)
        if ks == 2:
            a(f"s_mov_b32 s{sDL}, {SLOT}\ns_cmp_eq_u32 s{sSL}, 2\ns_cselect_b32 s{sDL}, {(-2*SLOT) & 0xffffffff}, s{sDL}\ns_cselect_b32 s{sSL}, -1, s{sSL}\ns_add_u32 s{sSL}, s{sSL}, 1")
            for r in adr: a(f"v_add_u32 v{r}, s{sDL}, v{r}")
    a("s_waitcnt lgkmcnt(0)")
    mf = [p1_mfma(G, st, FB) for st in range(NS)]
    for m in mf[:barpos]: a(m)
    a(f"s_cmp_eq_u32 s{sIT}, 9\ns_cbranch_scc1 L_P1_{tag}_last")
    a(f"s_cmp_lg_u32 s{sIT}, 1\ns_cbranch_scc1 L_P1_{tag}_nw\ns_waitcnt vmcnt(0)\nL_P1_{tag}_nw:")
    a("s_barrier")
    rd = p1_reads(G, NS, 0, FA)
    interleave(a, mf[barpos:], rd) if False else None
    k = 0; rest = mf[barpos:]
    per = -(-len(rd)//(len(rest)+1))
    for r in rd[:per]: a(r)
    k = per
    for m in rest:
        a(m)
        for r in rd[k:k+per]: a(r)
        k += per
    a(f"s_add_u32 s{sIT}, s{sIT}, 1\ns_branch L_P1_{tag}")
    a(f"L_P1_{tag}_last:")
    for m in mf[barpos:]: a(m)

XB=16; YB=40
WR=64
ACC2=88
def t_slot(a, dst, br):
    a(f"s_lshl_b32 s{dst}, s{sR}, 3\ns_add_u32 s{dst}, s{dst}, s{sCG}\ns_lshl_b32 s{dst}, s{dst}, 2\ns_add_u32 s{dst}, s{dst}, s{sTG}\ns_lshl_b32 s{dst}, s{dst}, 1\ns_add_u32 s{dst}, s{dst}, s{sCH}")
    a(f"s_mul_i32 s{dst}, s{dst}, 6144\ns_add_u32 s{dst}, s{dst}, {WS_T + br*16*8*8*6144}")
def f1_addr(a, dst, br):
    a(f"s_lshl_b32 s{dst}, s{sR}, 1\ns_add_u32 s{dst}, s{dst}, s{sKK}\ns_lshl_b32 s{dst}, s{dst}, 2\ns_add_u32 s{dst}, s{dst}, s{sTG}\ns_lshl_b32 s{dst}, s{dst}, 1\ns_add_u32 s{dst}, s{dst}, s{sCH}")
    a(f"s_lshl_b32 s{dst}, s{dst}, 7\ns_add_u32 s{dst}, s{dst}, {WS_F1 + br*256*128}")
def publish_frags(a, br, nfr):
    sA=76; sF=77
    t_slot(a, sA, br)
    a("v_lshlrev_b32 v1, 4, v0")
    for k in range(nfr):
        if k == 4: a(f"s_add_u32 s{sA}, s{sA}, 4096")
        a(f"buffer_store_dwordx4 {V(XB+4*k,4)}, v1, {S(SRD_WS)}, s{sA} offen offset:{1024*(k%4)} sc1")
def publish_flag(a, br):
    sF=77
    f1_addr(a, sF, br)
    a(f"s_lshl_b32 s76, s{sDQ}, 2\ns_add_u32 s76, s76, s{sF}")
    a(f"s_waitcnt vmcnt(0)\nv_mov_b32 v2, s{sNONCE}\ns_mov_b64 exec, 1\nbuffer_store_dword v2, off, {S(SRD_WS)}, s76 sc1\ns_mov_b64 exec, -1")

def epi_G(a):
    a("s_barrier")
    a(f"v_and_b32 v12, 31, v0\ns_lshl_b32 s{sT}, s{sTG}, 5\nv_add_u32 v13, s{sT}, v12\nv_lshlrev_b32 v13, 4, v13\nv_add_u32 v13, {L_TT}, v13")
    a(f"v_mov_b32 v14, {L_TZ}\nv_cmp_gt_u32 vcc, 32, v0\nv_cndmask_b32 v13, v14, v13, vcc")
    a(f"ds_read_b128 {V(FA,4)}, v13")
    a(f"s_mul_i32 s{sT}, s{sCH}, 96\nv_add_u32 v12, s{sT}, v12\nv_lshlrev_b32 v12, 4, v12\nv_add_u32 v12, {L_WT}, v12")
    for st in range(3): a(f"ds_read_b128 {V(FA+4+4*st,4)}, v12 offset:{512*st}")
    a("s_waitcnt lgkmcnt(0)")
    for st in range(3): a(p1_mfma(True, st, FA))
    for st in range(3):
        for i in range(16): a(f"v_max_f32 v{ACC1+16*st+i}, 0, v{ACC1+16*st+i}")
        for i in range(0, 16, 2): a(f"v_pk_mul_f32 {V(ACC1+16*st+i,2)}, {V(ACC1+16*st+i,2)}, {V(ACC1+16*st+i,2)}")
        for i in range(0, 16, 2): a(f"v_cvt_pk_bf16_f32 v{XB+8*st+i//2}, v{ACC1+16*st+i}, v{ACC1+16*st+i+1}")
    publish_frags(a, 1, 6)

RS=FB
QP="quad_perm:[1,0,3,2] row_mask:0xf bank_mask:0xf"
def epi_S(a, NS, tag):
    a("s_barrier")
    pi_lane(a, 12, 13)
    a(f"s_lshl_b32 s{sT}, s{sTG}, 5\nv_add_u32 v13, s{sT}, v12\nv_lshlrev_b32 v13, 4, v13\nv_add_u32 v13, {L_TT}, v13")
    a(f"v_mov_b32 v14, {L_TZ}\nv_cmp_gt_u32 vcc, 32, v0\nv_cndmask_b32 v13, v14, v13, vcc")
    a(f"ds_read_b128 {V(FA,4)}, v13")
    a(f"v_and_b32 v12, 31, v0\ns_mul_i32 s{sT}, s{sCH}, 96\nv_add_u32 v11, s{sT}, v12\nv_lshlrev_b32 v12, 4, v11\nv_add_u32 v12, {L_WT}, v12")
    for st in range(NS): a(f"ds_read_b128 {V(FA+4+4*st,4)}, v12 offset:{512*st}")
    a(f"v_lshrrev_b32 v13, 5, v0\nv_lshlrev_b32 v13, 6, v13\ns_lshl_b32 s{sT}, s{sTG}, 7\ns_add_u32 s{sT}, s{sT}, {L_RS}\nv_add_u32 v13, s{sT}, v13")
    for q in range(4): a(f"ds_read_b128 {V(RS+4*q,4)}, v13 offset:{16*q}")
    a("s_waitcnt lgkmcnt(4)")
    for st in range(NS): a(p1_mfma(False, st, FA))
    a("s_waitcnt lgkmcnt(0)")
    A = lambda st, r: ACC1+16*st+r
    for st in range(NS):
        for r in range(0, 16, 2): a(f"v_pk_mul_f32 {V(A(st,r),2)}, {V(A(st,r),2)}, {V(RS+r,2)}")
    for r in range(16):
        for st in range(NS): a(f"v_mul_f32_dpp v{FA+st}, v{A(st,r)}, v{KC+4*st+3} {QP}")
        for st in range(NS): a(f"v_fma_f32 v{A(st,r)}, v{A(st,r)}, v{KC+4*st+2}, v{FA+st}")
    E0, E1 = FA+4, FA+8
    cur = [A(st,0) for st in range(NS)]
    for r in range(1, 16):
        nx = [(E0 if r & 1 else E1)+st for st in range(NS)]
        for st in range(NS): a(f"v_fma_f32 v{nx[st]}, v{cur[st]}, v{KC+4*st}, v{A(st,r)}")
        for st in range(NS): a(f"v_fmac_f32_dpp v{nx[st]}, v{cur[st]}, v{KC+4*st+1} {QP}")
        cur = nx
    a(f"v_lshrrev_b32 v13, 5, v0\nv_mul_u32_u24 v13, 640, v13\nv_lshl_add_u32 v13, v11, 2, v13\ns_mul_i32 s{sT}, s{sTG}, 1280\ns_add_u32 s{sT}, s{sT}, {L_ESEG}\nv_add_u32 v13, s{sT}, v13")
    for st in range(NS): a(f"ds_write_b32 v13, v{cur[st]} offset:{128*st}")
    a("s_waitcnt lgkmcnt(0)\ns_barrier")
    a(f"s_lshl_b32 s{sT}, s{sW}, 11\ns_add_u32 s{sT}, s{sT}, {L_TR}")
    a("v_and_b32 v12, 31, v0\nv_bfe_u32 v14, v0, 2, 2\nv_lshrrev_b32 v15, 5, v0\nv_lshlrev_b32 v15, 1, v15\nv_xor_b32 v14, v14, v15")
    a(f"v_lshlrev_b32 v12, 6, v12\nv_lshl_add_u32 v8, v14, 4, v12\nv_add_u32 v8, s{sT}, v8\nv_xor_b32 v9, 16, v8")
    a("v_bfe_u32 v12, v0, 2, 2\nv_lshrrev_b32 v13, 5, v0\nv_lshl_add_u32 v12, v13, 3, v12\nv_lshlrev_b32 v12, 6, v12")
    a("v_bfe_u32 v14, v0, 4, 1\nv_bfe_u32 v15, v0, 1, 1\nv_lshl_add_u32 v14, v14, 1, v15\nv_lshlrev_b32 v13, 1, v13\nv_xor_b32 v14, v14, v13")
    a(f"v_and_b32 v15, 1, v0\nv_lshl_add_u32 v12, v15, 3, v12\nv_add_u32 v12, s{sT}, v12")
    a("v_lshl_add_u32 v10, v14, 4, v12\nv_xor_b32 v14, 1, v14\nv_lshl_add_u32 v7, v14, 4, v12\nv_add_u32 v7, 256, v7")
    a(f"v_lshrrev_b32 v13, 5, v0\nv_mul_u32_u24 v13, 640, v13\nv_lshl_add_u32 v13, v11, 2, v13\ns_mul_i32 s{sT}, s{sTG}, 1280\ns_add_u32 s{sT}, s{sT}, {L_ESEG}\nv_add_u32 v13, s{sT}, v13")
    a("s_barrier")
    for st in range(NS): a(f"ds_read_b32 v{FA+st}, v13 offset:{128*st}")
    a("s_waitcnt lgkmcnt(0)")
    for r in range(16):
        prev = [FA+st if r == 0 else A(st, r-1) for st in range(NS)]
        for st in range(NS): a(f"v_fmac_f32 v{A(st,r)}, v{prev[st]}, v{KC+4*st}")
        for st in range(NS): a(f"v_fmac_f32_dpp v{A(st,r)}, v{prev[st]}, v{KC+4*st+1} {QP}")
    for st in range(NS):
        for r in range(0, 16, 2): a(f"v_cvt_pk_bf16_f32 v{YB+r//2}, v{A(st,r)}, v{A(st,r+1)}")
        a(f"ds_write_b128 v8, {V(YB,4)}\nds_write_b128 v9, {V(YB+4,4)}")
        for kq in range(2):
            a(f"ds_read_b64_tr_b16 {V(XB+8*st+4*kq,2)}, v10 offset:{1024*kq}")
            a(f"ds_read_b64_tr_b16 {V(XB+8*st+4*kq+2,2)}, v7 offset:{1024*kq}")
    a("s_waitcnt lgkmcnt(0)")
    publish_frags(a, 0, 2*NS)
```

```python
from gp_common import *
sLW=sTG
sSLOT=70; sXO=71; sWO=72; sT=73; sIT=74; sT2=75; sEX=77
BOUND=1<<16
def adv_slot(a, reg):
    a(f"s_add_u32 s{reg}, s{reg}, {SLOT}\ns_cmp_eq_u32 s{reg}, {3*SLOT}\ns_cselect_b32 s{reg}, 0, s{reg}")
def issue1(a, G):
    a(f"s_lshl_b32 s{sT}, s{sLW}, 10\ns_add_u32 m0, s{sSLOT}, s{sT}\ns_mov_b32 s{sT2}, s{sXO}")
    for n in range(4):
        if n: a(f"s_add_u32 m0, m0, 4096\ns_add_u32 s{sT2}, s{sT2}, 40960")
        a(f"buffer_load_dwordx4 v1, {S(SRD_X)}, s{sT2} offen lds")
    if G:
        a(f"s_mul_i32 s{sT}, s{sLW}, 6144\ns_add_u32 s{sT}, s{sT}, 16384\ns_add_u32 m0, s{sSLOT}, s{sT}\ns_mov_b32 s{sT2}, s{sWO}")
        for n in range(6):
            if n: a("s_add_u32 m0, m0, 1024")
            if n == 3: a(f"s_add_u32 s{sT2}, s{sT2}, {8*3072}")
            a("s_nop 0")
            a(f"buffer_load_dwordx4 v{2+n%3}, {S(SRD_A)}, s{sT2} offen lds")
        a(f"s_add_u32 s{sWO}, s{sWO}, {64*3072}")
    else:
        a(f"s_lshl_b32 s{sT}, s{sLW}, 10\ns_add_u32 s{sT}, s{sT}, 16384\ns_add_u32 m0, s{sSLOT}, s{sT}\ns_mov_b32 s{sT2}, s{sWO}")
        for n in range(5):
            if n: a(f"s_add_u32 m0, m0, 4096\ns_add_u32 s{sT2}, s{sT2}, 20480")
            a(f"buffer_load_dwordx4 v1, {S(SRD_A)}, s{sT2} offen lds")
        a(f"s_add_u32 s{sWO}, s{sWO}, 128")
    a(f"s_add_u32 s{sXO}, s{sXO}, 128")
    adv_slot(a, sSLOT)

def issue2(a, G, j, uid):
    i = j >> 1; hs = j & 1
    a(f"s_add_u32 s{sT}, s{sDQ}, {i}\ns_and_b32 s{sT}, s{sT}, 3")
    slot = P2SLOT[j & 3]
    if G:
        a(f"s_lshl_b32 s{sT2}, s{sKK}, 2\ns_add_u32 s{sT}, s{sT}, s{sT2}\ns_mul_i32 s{sT}, s{sT}, {192*1280}\ns_mul_i32 s{sT2}, s{sDQ}, 320\ns_add_u32 s{sT}, s{sT}, s{sT2}")
        if hs: a(f"s_add_u32 s{sT}, s{sT}, {48*1280}")
        a(f"s_lshl_b32 s{sT2}, s{sLW}, 10\ns_add_u32 m0, s{sT2}, {slot}")
        for n in range(8):
            if n: a("s_add_u32 m0, m0, 4096")
            if n == 7: a(f"s_cmp_ge_u32 s{sLW}, 2\ns_cbranch_scc1 L_i2skip_{uid}")
            a("s_nop 0")
            a(f"buffer_load_dwordx4 v{5+n}, {S(SRD_B)}, s{sT} offen lds")
        a(f"L_i2skip_{uid}:")
    else:
        a(f"s_lshl_b32 s{sT2}, s{sKK}, 2\ns_add_u32 s{sT2}, s{sT2}, s{sDQ}\ns_lshl_b32 s{sT2}, s{sT2}, 2\ns_add_u32 s{sT}, s{sT}, s{sT2}")
        a(f"s_lshl_b32 s{sT}, s{sT}, 1\ns_add_u32 s{sT}, s{sT}, {hs}\ns_mul_i32 s{sT}, s{sT}, 25600\ns_add_u32 s{sT}, s{sT}, {WS_CREP}")
        a(f"s_lshl_b32 s{sT2}, s{sLW}, 10\ns_add_u32 s{sT}, s{sT}, s{sT2}\ns_add_u32 m0, s{sT2}, {slot}")
        for n in range(7):
            if n: a(f"s_add_u32 m0, m0, 4096\ns_add_u32 s{sT}, s{sT}, 4096")
            if n == 6: a(f"s_cmp_ge_u32 s{sLW}, 1\ns_cbranch_scc1 L_i2skip_{uid}")
            a("s_nop 0")
            a(f"buffer_load_dwordx4 v5, {S(SRD_WS)}, s{sT} offen sc1 lds")
        a(f"L_i2skip_{uid}:")

def pack_hi_lo(a, x, hi, lo, t):
    a(f"v_cvt_pk_bf16_f32 v{hi}, v{x}, v{x}\nv_lshlrev_b32 v{t}, 16, v{hi}\nv_sub_f32 v{t}, v{x}, v{t}\nv_cvt_pk_bf16_f32 v{lo}, v{t}, v{t}")

def loader(a, G, stop=None):
    p = "G" if G else "S"
    n1 = 10 if G else 9
    a(f"L_LOADER_{p}:")
    a(f"buffer_load_dword v40, off, {S(SRD_WS)}, 0 sc1")
    a(f"s_and_b32 s{sT}, s{sLW}, 1\ns_lshl_b32 s{sT}, s{sT}, 2")
    a(f"v_lshrrev_b32 v2, 4, v0\nv_add_u32 v2, s{sT}, v2\nv_and_b32 v2, 7, v2\nv_and_b32 v3, 7, v0\nv_xor_b32 v2, v2, v3\nv_lshlrev_b32 v2, 4, v2")
    a("v_lshrrev_b32 v3, 3, v0\nv_mul_u32_u24 v3, 1280, v3\nv_add_u32 v1, v2, v3")
    a(f"s_lshl_b32 s{sXO}, s{sR}, 7\ns_lshl_b32 s{sT}, s{sLW}, 3\ns_add_u32 s{sXO}, s{sXO}, s{sT}\ns_mul_i32 s{sXO}, s{sXO}, 1280")
    if G:
        srd(a, SRD_A, pW1, SZ_W1)
        a(f"s_lshl_b32 s{sWO}, s{sLW}, 4\ns_mul_i32 s{sWO}, s{sWO}, 3072\ns_mul_i32 s{sT}, s{sCG}, 384\ns_add_u32 s{sWO}, s{sWO}, s{sT}")
        for ty in range(3):
            a(f"v_lshlrev_b32 v13, 4, v0\nv_add_u32 v13, {1024*ty}, v13\nv_mul_u32_u24 v14, 43691, v13\nv_lshrrev_b32 v14, 24, v14")
            a("v_mul_u32_u24 v15, 384, v14\nv_sub_u32 v15, v13, v15")
            a("v_lshrrev_b32 v16, 1, v14\nv_and_b32 v16, 1, v16\nv_lshlrev_b32 v16, 6, v16\nv_xor_b32 v15, v15, v16")
            a(f"v_mul_u32_u24 v14, 3072, v14\nv_add_u32 v{2+ty}, v14, v15")
    else:
        a(f"s_and_b32 s{sT}, s{sLW}, 1\ns_cmp_eq_u32 s{sT}, 1\ns_cselect_b64 s[{SRD_A}:{SRD_A+1}], s[{pBIM}:{pBIM+1}], s[{pBRE}:{pBRE+1}]")
        a(f"s_mov_b32 s{SRD_A+2}, {SZ_BC}\ns_mov_b32 s{SRD_A+3}, 0x20000")
        a(f"s_mul_i32 s{sWO}, s{sCG}, 80\ns_lshr_b32 s{sT}, s{sLW}, 1\ns_lshl_b32 s{sT}, s{sT}, 3\ns_add_u32 s{sWO}, s{sWO}, s{sT}\ns_mul_i32 s{sWO}, s{sWO}, 1280")
    a(f"s_mov_b32 s{sSLOT}, {2*SLOT}")
    issue1(a, G); issue1(a, G)
    if G:
        srd(a, SRD_B, pW2, SZ_W2)
        for n in range(8):
            a(f"s_lshl_b32 s{sT}, s{sLW}, 10\ns_add_u32 s{sT}, s{sT}, {4096*n}")
            a(f"v_lshl_add_u32 v13, v0, 4, s{sT}\nv_cmp_le_u32 vcc, 15360, v13\nv_cndmask_b32 v14, 0, 1, vcc")
            a("v_mul_u32_u24 v15, 15360, v14\nv_sub_u32 v13, v13, v15\nv_mul_u32_u24 v15, 52429, v13\nv_lshrrev_b32 v15, 24, v15")
            a("v_mul_u32_u24 v16, 320, v15\nv_sub_u32 v13, v13, v16\nv_mad_u32_u24 v15, v14, 48, v15\nv_mad_u32_u24 v15, v14, 48, v15")
            a(f"v_mul_u32_u24 v15, 1280, v15\nv_add_u32 v{5+n}, v15, v13")
    else:
        a("v_lshlrev_b32 v5, 4, v0")
    a(f"v_mov_b32 v16, 0\nv_mov_b32 v17, 0\nv_mov_b32 v18, 0\nv_mov_b32 v19, 0\nv_mov_b32 v13, {L_TZ}\nds_write_b128 v13, v[16:19]")
    a(f"v_lshlrev_b32 v13, 4, v0\nv_add_u32 v41, {WS_F0}, v13")
    a(f"s_mov_b32 s{sIT}, 0\ns_mov_b32 s{sEX}, 0")
    a(f"L_LD{p}_LOOP:")
    a(f"s_cmp_eq_u32 s{sEX}, 0\ns_cbranch_scc1 L_LD{p}_w0\ns_waitcnt vmcnt({n1+1}) lgkmcnt(0)\ns_branch L_LD{p}_w1")
    a(f"L_LD{p}_w0:\ns_waitcnt vmcnt({n1}) lgkmcnt(0)\nL_LD{p}_w1:\ns_mov_b32 s{sEX}, 0")
    a(f"s_cmp_lg_u32 s{sIT}, 0\ns_cbranch_scc1 L_LD{p}_n0")
    a(f"v_readfirstlane_b32 s{sNONCE}, v40\ns_mul_i32 s{sNONCE}, s{sNONCE}, 1664525\ns_add_u32 s{sNONCE}, s{sNONCE}, 1013904223")
    a(f"L_LD{p}_n0:")
    a("s_barrier")
    if G:
        a(f"s_cmp_lg_u32 s{sIT}, 0\ns_cbranch_scc1 L_LDG_n1\ns_cmp_lg_u32 s{sLW}, 3\ns_cbranch_scc1 L_LDG_n1")
        a(f"v_lshlrev_b32 v13, 4, v0\nv_add_u32 v14, {L_CSST}, v13")
        a("s_mov_b32 exec_lo, -1\ns_mov_b32 exec_hi, 0xffff")
        for w in range(8): a(f"ds_read_b128 v[{44+4*w}:{47+4*w}], v14 offset:{768*w}")
        a("s_waitcnt lgkmcnt(0)")
        for w in range(1, 8):
            for c in range(4): a(f"v_add_f32 v{44+c}, v{44+c}, v{44+4*w+c}")
        a(f"s_mul_i32 s{sT}, s{sR}, 6144\ns_mul_i32 s{sT2}, s{sCG}, 768\ns_add_u32 s{sT}, s{sT}, s{sT2}\ns_add_u32 s{sT}, s{sT}, {WS_CSG}")
        a(f"buffer_store_dwordx4 v[44:47], v13, {S(SRD_WS)}, s{sT} offen sc1")
        a(f"s_mov_b64 exec, -1\ns_mov_b32 s{sEX}, 1")
        a("L_LDG_n1:")
    a(f"s_cmp_lg_u32 s{sIT}, 2\ns_cbranch_scc1 L_LD{p}_n2\ns_cmp_lg_u32 s{sLW}, 0\ns_cbranch_scc1 L_LD{p}_n2")
    a(f"v_mov_b32 v13, s{sNONCE}\ns_lshl_b32 s{sT}, s2, 2\ns_add_u32 s{sT}, s{sT}, {WS_F0}\ns_mov_b64 exec, 1")
    a(f"buffer_store_dword v13, off, {S(SRD_WS)}, s{sT} sc1\ns_mov_b64 exec, -1\ns_mov_b32 s{sEX}, 1")
    a(f"L_LD{p}_n2:")
    a(f"s_cmp_lg_u32 s{sIT}, 5\ns_cbranch_scc1 L_LD{p}_n5")
    a(f"buffer_load_dwordx4 v[44:47], v41, {S(SRD_WS)}, 0 offen sc1\ns_mov_b32 s{sEX}, 1")
    a(f"L_LD{p}_n5:")
    a(f"s_cmp_eq_u32 s{sIT}, 7\ns_cbranch_scc1 L_LD{p}_tail")
    issue1(a, G)
    a(f"s_add_u32 s{sIT}, s{sIT}, 1\ns_branch L_LD{p}_LOOP")
    a(f"L_LD{p}_tail:")
    a(f"s_mov_b32 s{sIT}, {BOUND}")
    a(f"L_LD{p}_chk:")
    a(f"v_xor_b32 v44, s{sNONCE}, v44\nv_xor_b32 v45, s{sNONCE}, v45\nv_xor_b32 v46, s{sNONCE}, v46\nv_xor_b32 v47, s{sNONCE}, v47")
    a("v_or3_b32 v44, v44, v45, v46\nv_or_b32 v44, v44, v47\nv_cmp_ne_u32 vcc, 0, v44")
    a(f"s_cbranch_vccz L_LD{p}_ok")
    a(f"s_sub_u32 s{sIT}, s{sIT}, 1\ns_cmp_eq_u32 s{sIT}, 0\ns_cbranch_scc1 L_LD{p}_ok")
    a(f"buffer_load_dwordx4 v[44:47], v41, {S(SRD_WS)}, 0 offen sc1\ns_waitcnt vmcnt(0)\ns_branch L_LD{p}_chk")
    a(f"L_LD{p}_ok:")
    NC = 192 if G else 160
    a(f"s_cmp_eq_u32 s{sLW}, 3\ns_cbranch_scc1 L_LD{p}_gst")
    a(f"s_lshl_b32 s{sT}, s{sLW}, 6\nv_add_u32 v42, s{sT}, v0")
    a(f"v_min_u32 v42, {NC-1}, v42")
    if G:
        a(f"v_lshlrev_b32 v13, 2, v42\ns_mul_i32 s{sT}, s{sCG}, 768\ns_add_u32 s{sT}, s{sT}, {WS_CSG}")
        for r in range(16):
            a(f"buffer_load_dword v{44+r}, v13, {S(SRD_WS)}, s{sT} offen sc1")
            if r < 15: a(f"s_add_u32 s{sT}, s{sT}, 6144")
        a(f"s_mul_i32 s{sT}, s{sCG}, 192\nv_add_u32 v13, s{sT}, v42\nv_lshlrev_b32 v13, 1, v13\nglobal_load_ushort v60, v13, s[{pB1}:{pB1+1}]")
    else:
        a("v_and_b32 v13, 1, v42\nv_mul_u32_u24 v13, 640, v13\nv_lshrrev_b32 v14, 5, v42\nv_lshl_add_u32 v13, v14, 4, v13")
        a(f"v_and_b32 v14, 31, v42\nv_lshrrev_b32 v14, 1, v14\nv_add_u32 v13, v13, v14\ns_mul_i32 s{sT}, s{sCG}, 80\nv_add_u32 v13, s{sT}, v13\nv_lshlrev_b32 v13, 2, v13")
        a(f"s_mov_b32 s{sT}, {WS_CSS}\nbuffer_load_dword v44, v13, {S(SRD_WS)}, s{sT} offen sc1")
    a(f"s_branch L_LD{p}_gdone")
    a(f"L_LD{p}_gst:")
    a(f"v_lshlrev_b32 v13, 4, v0\ns_lshl_b32 s{sT}, s{sR}, 10\ns_add_u32 s{sT}, s{sT}, {WS_STATS}\nbuffer_load_dwordx4 v[44:47], v13, {S(SRD_WS)}, s{sT} offen sc1")
    a(f"L_LD{p}_gdone:")
    issue1(a, G)
    if G:
        a(f"s_cmp_eq_u32 s{sLW}, 3\ns_cbranch_scc1 L_LDG_w8a\ns_waitcnt vmcnt({n1+17})\ns_branch L_LDG_w8b\nL_LDG_w8a:\ns_waitcnt vmcnt({n1+1})\nL_LDG_w8b:")
    else:
        a(f"s_waitcnt vmcnt({n1+1})")
    a("s_barrier")
    issue2(a, G, 0, f"{p}0"); issue2(a, G, 1, f"{p}1")
    nw = 7 if G else 6
    a(f"s_waitcnt vmcnt({2*nw})")
    a("s_barrier")
    issue2(a, G, 2, f"{p}2")
    a(f"s_cmp_eq_u32 s{sLW}, 3\ns_cbranch_scc1 L_LD{p}_tst")
    if G:
        for r in range(1, 16): a(f"v_add_f32 v44, v44, v{44+r}")
    pack_hi_lo(a, 44, 45, 46, 47)
    a("s_mov_b32 s76, 0x05040100")
    a("v_perm_b32 v48, v45, v45, s76")
    if G:
        a("v_perm_b32 v49, v60, v46, s76\nv_and_b32 v50, 0xffff, v60")
    else:
        a("v_and_b32 v49, 0xffff, v46\nv_mov_b32 v50, 0")
    a(f"v_mov_b32 v51, 0\nv_lshlrev_b32 v13, 4, v42\nv_add_u32 v13, {L_WT}, v13\nds_write_b128 v13, v[48:51]")
    a(f"s_branch L_LD{p}_tdone")
    a(f"L_LD{p}_tst:")
    for t in range(2):
        m, rs = 44+2*t, 45+2*t
        a(f"v_sub_f32 v48, 0, v{m}")
        pack_hi_lo(a, 48, 49, 50, 51)
        a(f"v_rcp_f32 v52, v{rs}")
        pack_hi_lo(a, 52, 53, 54, 51)
        a("s_mov_b32 s76, 0x05040100")
        a("v_perm_b32 v56, v50, v49, s76\nv_perm_b32 v57, v53, v49, s76\nv_and_b32 v58, 0xffff, v54\nv_mov_b32 v59, 0")
        a(f"v_lshlrev_b32 v13, 5, v0\nv_add_u32 v13, {L_TT+16*t}, v13\nds_write_b128 v13, v[56:59]")
    a(f"v_lshlrev_b32 v13, 4, v0\nv_add_u32 v13, {L_ST}, v13\nds_write_b128 v13, v[44:47]")
    a(f"v_mov_b32 v48, v45\nv_mov_b32 v49, v47\nv_lshlrev_b32 v13, 3, v0\nv_add_u32 v13, {L_RS}, v13\nds_write_b64 v13, v[48:49]")
    a(f"L_LD{p}_tdone:")
    a("s_waitcnt lgkmcnt(0)\ns_barrier")
    if stop == "p1": bump(a, p); a("s_waitcnt vmcnt(0)\ns_endpgm"); return
    if not G: e_exchange(a)
    if stop == "epi": bump(a, p); a("s_waitcnt vmcnt(0)\ns_endpgm"); return
    for j in range(8):
        newer = min(2, 7-j) if j > 0 else 2
        newer = len([x for x in (j+1, j+2) if x <= 7])
        a(f"s_waitcnt vmcnt({newer*nw})\ns_barrier")
        if j+3 <= 7: issue2(a, G, j+3, f"{p}{j+3}")
    bump(a, p)
    a("s_endpgm")

def bump(a, p):
    a(f"s_cmp_lg_u32 s2, 0\ns_cbranch_scc1 L_LD{p}_nb\ns_cmp_lg_u32 s{sLW}, 0\ns_cbranch_scc1 L_LD{p}_nb")
    a(f"v_mov_b32 v13, s{sNONCE}\ns_mov_b64 exec, 1\nbuffer_store_dword v13, off, {S(SRD_WS)}, 0 sc1\ns_mov_b64 exec, -1")
    a(f"L_LD{p}_nb:")

def e_exchange(a):
    a("s_barrier")
    a(f"s_cmp_eq_u32 s{sLW}, 3\ns_cbranch_scc1 L_EX_done")
    a(f"s_lshl_b32 s{sT}, s{sLW}, 6\nv_add_u32 v42, s{sT}, v0")
    a(f"s_cmp_lg_u32 s{sLW}, 2\ns_cbranch_scc1 L_EX_full\ns_mov_b32 exec_hi, 0\nL_EX_full:")
    a(f"v_lshlrev_b32 v13, 2, v42\nv_add_u32 v13, {L_ESEG}, v13")
    for s in range(8): a(f"ds_read_b32 v{44+s}, v13 offset:{640*s}")
    a(f"v_lshlrev_b32 v14, 3, v42\nv_add_u32 v15, {L_A16}, v14\nds_read_b64 v[52:53], v15")
    a("v_and_b32 v16, 1, v0\nv_lshlrev_b32 v16, 31, v16\nv_or_b32 v16, 0x3f800000, v16")
    a("s_waitcnt lgkmcnt(0)")
    a("v_mul_f32 v54, v53, v16")
    a("v_mov_b32 v56, v44")
    for s in range(1, 8):
        a(f"v_mov_b32 v57, v{44+s}\nv_fmac_f32 v57, v56, v52\nv_fmac_f32_dpp v57, v56, v54 quad_perm:[1,0,3,2] row_mask:0xf bank_mask:0xf\nv_mov_b32 v56, v57")
    a(f"v_mov_b32 v57, s{sNONCE}")
    a(f"s_lshl_b32 s{sT}, s{sR}, 3\ns_add_u32 s{sT}, s{sT}, s{sCG}\ns_mul_i32 s{sT}, s{sT}, 1280\ns_add_u32 s{sT}, s{sT}, {WS_EG}")
    a(f"buffer_store_dwordx2 v[56:57], v14, {S(SRD_WS)}, s{sT} offen sc1")
    a("v_mov_b32 v58, v52\nv_mov_b32 v59, v53")
    for _ in range(3):
        a("v_mul_f32 v60, v59, v59\nv_mul_f32 v61, v58, v59\nv_fma_f32 v58, v58, v58, -v60\nv_add_f32 v59, v61, v61")
    a("v_mul_f32 v59, v59, v16")
    a(f"s_mov_b32 s{sIT}, {BOUND}")
    a("L_EX_retry:")
    for j in range(1, 16): a(f"v_mov_b32 v{62+2*j}, 0\nv_mov_b32 v{63+2*j}, s{sNONCE}")
    a(f"s_mov_b32 s{sT2}, s{sT}")
    for j in range(1, 16):
        a(f"s_cmp_lt_u32 s{sR}, {j}\ns_cbranch_scc1 L_EX_iss")
        a(f"s_sub_u32 s{sT2}, s{sT2}, {8*1280}")
        a(f"buffer_load_dwordx2 v[{62+2*j}:{63+2*j}], v14, {S(SRD_WS)}, s{sT2} offen sc1")
    a("L_EX_iss:")
    a("s_waitcnt vmcnt(0)")
    a(f"v_xor_b32 v60, s{sNONCE}, v65")
    for j in range(2, 16):
        a(f"v_xor_b32 v61, s{sNONCE}, v{63+2*j}\nv_or_b32 v60, v60, v61")
    a("v_cmp_ne_u32 vcc, 0, v60")
    a("s_cbranch_vccz L_EX_go")
    a(f"s_sub_u32 s{sIT}, s{sIT}, 1\ns_cmp_lg_u32 s{sIT}, 0\ns_cbranch_scc1 L_EX_retry")
    a("L_EX_go:")
    a(f"v_mov_b32 v56, v{62+30}")
    for j in range(14, 0, -1):
        g = 62+2*j
        a(f"v_fmac_f32 v{g}, v56, v58\nv_fmac_f32_dpp v{g}, v56, v59 quad_perm:[1,0,3,2] row_mask:0xf bank_mask:0xf\nv_mov_b32 v56, v{g}")
    for s in range(8):
        a(f"ds_write_b32 v13, v56 offset:{640*s}")
        if s < 7:
            a(f"v_fmac_f32 v{44+s}, v56, v52\nv_fmac_f32_dpp v{44+s}, v56, v54 quad_perm:[1,0,3,2] row_mask:0xf bank_mask:0xf\nv_mov_b32 v56, v{44+s}")
    a("s_mov_b64 exec, -1\ns_waitcnt lgkmcnt(0)")
    a("L_EX_done:")
    a("s_barrier")
```

```python
from gp_common import *
from gp_compute import MF, XB, YB, WR, ACC2, t_slot, f1_addr, publish_flag, sT, sT2
BOUND=1<<16
sTA=78; sP=79; sIT2=80
RING=6; LA=5
def tok_loads(a, br, i, buf, nfr):
    a(f"s_add_u32 s{sT}, s{sDQ}, {i}\ns_and_b32 s{sT}, s{sT}, 3\ns_lshl_b32 s{sT2}, s{sKK}, 2\ns_add_u32 s{sT}, s{sT}, s{sT2}")
    a(f"s_lshl_b32 s{sTA}, s{sR}, 3\ns_add_u32 s{sTA}, s{sTA}, s{sT}\ns_lshl_b32 s{sTA}, s{sTA}, 2\ns_add_u32 s{sTA}, s{sTA}, s{sTG}\ns_lshl_b32 s{sTA}, s{sTA}, 1\ns_add_u32 s{sTA}, s{sTA}, s{sCH}")
    a(f"s_mul_i32 s{sTA}, s{sTA}, 6144\ns_add_u32 s{sTA}, s{sTA}, {WS_T + br*16*8*8*6144}")
    for k in range(nfr):
        if k == 4: a(f"s_add_u32 s{sTA}, s{sTA}, 4096")
        a(f"buffer_load_dwordx4 {V(buf+4*k,4)}, v1, {S(SRD_WS)}, s{sTA} offen offset:{1024*(k%4)} sc1")
def poll_f1(a, br, tag):
    f1_addr(a, sP, br)
    a(f"s_mov_b32 s{sIT2}, {BOUND}")
    a(f"L_PF1_{tag}:")
    a(f"buffer_load_dwordx4 v[12:15], off, {S(SRD_WS)}, s{sP} sc1\ns_waitcnt vmcnt(0)")
    a(f"v_xor_b32 v12, s{sNONCE}, v12\nv_xor_b32 v13, s{sNONCE}, v13\nv_xor_b32 v14, s{sNONCE}, v14\nv_xor_b32 v15, s{sNONCE}, v15")
    a("v_or3_b32 v12, v12, v13, v14\nv_or_b32 v12, v12, v15\nv_cmp_ne_u32 vcc, 0, v12")
    a(f"s_cbranch_vccz L_PF1_{tag}_ok\ns_sub_u32 s{sIT2}, s{sIT2}, 1\ns_cmp_lg_u32 s{sIT2}, 0\ns_cbranch_scc1 L_PF1_{tag}")
    a(f"L_PF1_{tag}_ok:")

PF=XB
def final_prefetch(a, br):
    qf_expr(a, br, 81)
    a(f"s_lshl_b32 s82, s{sR}, 7\ns_lshl_b32 s83, s81, 5\ns_add_u32 s82, s82, s83")
    a("v_and_b32 v2, 31, v0\nv_add_u32 v2, s82, v2")
    a("v_lshrrev_b32 v3, 5, v0\nv_lshlrev_b32 v3, 3, v3")
    a("v_mul_u32_u24 v6, 1280, v2\nv_add_u32 v6, v6, v3")
    for g in range(3):
        a(f"s_add_u32 s84, s{sW}, {8*g}\ns_min_u32 s84, s84, 19\ns_lshr_b32 s85, s84, 2\ns_lshl_b32 s85, s85, 5\ns_and_b32 s86, s84, 3\ns_lshl_b32 s86, s86, 3\ns_add_u32 s85, s85, s86")
        a(f"s_mul_i32 s86, s{sDQ}, 160\ns_add_u32 s85, s85, s86\ns_lshl_b32 s{87+g}, s85, 1")
        a(f"buffer_load_dwordx2 {V(PF+6*g,2)}, v6, {S(SRD_X)}, s{87+g} offen")
        a(f"v_add_u32 v7, s{87+g}, v3")
        a(f"global_load_dwordx2 {V(PF+6*g+2,2)}, v7, s[{pDSK}:{pDSK+1}]\nglobal_load_dwordx2 {V(PF+6*g+4,2)}, v7, s[{pB2}:{pB2+1}]")
    return 9
def qf_expr(a, br, dst):
    a(f"s_add_u32 s{dst}, s{sKK}, {2*br}")

def phase2(a, G, ch, tag, flagslab=0):
    br = 1 if G else 0
    nk = 3 if (G or ch == 0) else 2
    nfr = 2*nk
    PS = 5*nk; N = 8*PS
    tb = PS - 3
    if G:
        a("v_bfe_u32 v12, v0, 2, 2\nv_lshrrev_b32 v13, 5, v0\nv_lshl_add_u32 v13, v13, 2, v12\nv_mul_u32_u24 v13, 320, v13")
        a("v_bfe_u32 v14, v0, 4, 1\nv_lshl_add_u32 v13, v14, 5, v13\nv_and_b32 v14, 3, v0\nv_lshl_add_u32 v13, v14, 3, v13")
        a(f"s_mul_i32 s{sT}, s{sCH}, 15360\nv_add_u32 v4, s{sT}, v13")
    else:
        a(f"v_lshlrev_b32 v4, 4, v0")
        if ch: a("v_add_u32 v4, 15360, v4")
    a("v_lshlrev_b32 v1, 4, v0")
    q = []
    def adr(j): return 5 + (j & 1)
    def adr(j): return 8 + (j & 1)
    def set_adr(j): a(f"v_add_u32 v{adr(j)}, {P2SLOT[j&3]}, v4")
    def frag_read(n):
        j, t = divmod(n, PS); kk, dt = divmod(t, 5)
        r = WR + 4*(n % RING)
        if G:
            o = kk*5120 + dt*64
            a(f"ds_read_b64_tr_b16 {V(r,2)}, v{adr(j)} offset:{o}"); q.append(n)
            a(f"ds_read_b64_tr_b16 {V(r+2,2)}, v{adr(j)} offset:{o+2560}"); q.append(n)
        else:
            a(f"ds_read_b128 {V(r,4)}, v{adr(j)} offset:{1024*t}"); q.append(n)
    def wait_frag(n):
        if n not in q: return
        last = len(q) - 1 - q[::-1].index(n)
        cnt = len(q) - 1 - last
        a(f"s_waitcnt lgkmcnt({cnt})")
        del q[:last+1]
    vm = []
    def wait_vm(lbl):
        if lbl not in vm: return
        last = len(vm) - 1 - vm[::-1].index(lbl)
        a(f"s_waitcnt vmcnt({len(vm)-1-last})")
        del vm[:last+1]
    buf = [XB, YB, XB, YB]
    set_adr(0); set_adr(1)
    a("s_barrier")
    rp = 0; allowed = PS
    while rp < LA: frag_read(rp); rp += 1
    for n in range(N):
        j, t = divmod(n, PS); kk, dt = divmod(t, 5)
        i = j >> 1; hs = j & 1
        if t == tb:
            assert rp == (j+1)*PS, (rp, j)
            a("s_waitcnt lgkmcnt(0)"); q.clear()
            a("s_barrier")
            allowed = min(N, (j+2)*PS)
            if j+2 <= 7: set_adr(j+2)
            while rp < min(allowed, n + LA): frag_read(rp); rp += 1
        if dt == 0:
            k = nk*hs + kk
            if i > 0: wait_vm((i, k))
        wait_frag(n)
        acc = V(ACC2+16*dt, 16)
        tf = V(buf[i] + 4*(nk*hs + kk), 4)
        c = "0" if (j == 0 and kk == 0) else acc
        a(f"{MF} {acc}, {V(WR+4*(n%RING),4)}, {tf}, {c}")
        while rp < min(allowed, n + 1 + LA): frag_read(rp); rp += 1
        if t == PS-1:
            if j == flagslab: publish_flag(a, br)
            if j == 1:
                poll_f1(a, br, tag)
                tok_loads(a, br, 1, YB, nfr); vm += [(1, k) for k in range(nfr)]
                tok_loads(a, br, 2, XB, nfr); vm += [(2, k) for k in range(nfr)]
            if j == 3:
                tok_loads(a, br, 3, YB, nfr); vm += [(3, k) for k in range(nfr)]
            if j == 5:
                nops = final_prefetch(a, br); vm += [("pf", k) for k in range(nops)]

XO_OWN=81920
def final(a, G, tag):
    br = 1 if G else 0
    a(f"s_mul_i32 s{sT}, s{sW}, 10240\nv_add_u32 v4, s{sT}, v1")
    a(f"s_xor_b32 s{sT}, s{sW}, 4\ns_mul_i32 s{sT}, s{sT}, 10240\nv_add_u32 v5, s{sT}, v1")
    a(f"s_cmp_eq_u32 s{sCH}, 0\ns_cbranch_scc1 L_FX0_{tag}")
    for g in range(10): a(f"ds_write_b128 v4, {V(ACC2+4*g,4)} offset:{1024*g}")
    a("s_waitcnt lgkmcnt(0)\ns_barrier")
    for g in range(10): a(f"ds_read_b128 {V(ACC2+4*g,4)}, v5 offset:{1024*g}")
    a("s_waitcnt lgkmcnt(0)")
    for r in range(0, 40, 2): a(f"v_pk_add_f32 {V(ACC2+r,2)}, {V(ACC2+r,2)}, {V(ACC2+40+r,2)}")
    a(f"s_branch L_FX1_{tag}")
    a(f"L_FX0_{tag}:")
    for g in range(10): a(f"ds_write_b128 v4, {V(ACC2+40+4*g,4)} offset:{1024*g}")
    a("s_waitcnt lgkmcnt(0)\ns_barrier")
    for g in range(10): a(f"ds_read_b128 {V(ACC2+40+4*g,4)}, v5 offset:{1024*g}")
    a("s_waitcnt lgkmcnt(0)")
    for r in range(0, 40, 2): a(f"v_pk_add_f32 {V(ACC2+r,2)}, {V(ACC2+r,2)}, {V(ACC2+40+r,2)}")
    a(f"L_FX1_{tag}:")
    a(f"s_cmp_eq_u32 s{sTG}, s81\ns_cbranch_scc1 L_OWN_{tag}")
    a(f"s_lshl_b32 s84, s{sR}, 2\ns_add_u32 s84, s84, s{sDQ}\ns_lshl_b32 s84, s84, 2\ns_add_u32 s84, s84, s{sTG}\ns_lshl_b32 s84, s84, 2\ns_add_u32 s84, s84, s81")
    a(f"s_mul_i32 s84, s84, 20\ns_mul_i32 s85, s{sCH}, 10\ns_add_u32 s84, s84, s85\ns_lshl_b32 s84, s84, 10\ns_add_u32 s84, s84, {WS_X}")
    T0 = ACC2+40
    for k in range(10):
        t = T0 + 4*(k % 4)
        a(f"v_cvt_pk_bf16_f32 v{t}, v{ACC2+4*k}, v{ACC2+4*k+1}\nv_mov_b32 v{t+1}, s{sNONCE}\nv_cvt_pk_bf16_f32 v{t+2}, v{ACC2+4*k+2}, v{ACC2+4*k+3}\nv_mov_b32 v{t+3}, s{sNONCE}")
        if k in (4, 8): a("s_add_u32 s84, s84, 4096")
        a(f"buffer_store_dwordx4 {V(t,4)}, v1, {S(SRD_WS)}, s84 offen offset:{1024*(k%4)} sc1")
    a(f"s_branch L_SENT_{tag}")
    a(f"L_OWN_{tag}:")
    a(f"s_mul_i32 s84, s{sCH}, 10240\ns_add_u32 s84, s84, {XO_OWN}\nv_add_u32 v4, s84, v1")
    for k in range(10): a(f"ds_write_b128 v4, {V(ACC2+4*k,4)} offset:{1024*k}")
    a(f"L_SENT_{tag}:")
    a("s_waitcnt lgkmcnt(0)\ns_barrier")
    a(f"s_lshl_b32 s84, s{sR}, 2\ns_add_u32 s84, s84, s{sDQ}\ns_lshl_b32 s84, s84, 2\ns_add_u32 s84, s84, s81\ns_lshl_b32 s84, s84, 2")
    a(f"s_mul_i32 s84, s84, {20*1024}\ns_add_u32 s84, s84, {WS_X}")
    a("s_xor_b32 s85, s81, 1")
    a(f"s_mul_i32 s85, s85, {20*1024}\ns_add_u32 s85, s85, s84")
    ob = 0 if G else 2
    a(f"s_add_u32 s86, s84, {ob*20*1024}")
    IN = ACC2
    OW = ACC2+40
    a(f"v_add_u32 v5, {XO_OWN}, v1")
    for g in range(3):
        a(f"s_add_u32 s90, s{sW}, {8*g}\ns_min_u32 s90, s90, 19\ns_lshl_b32 s{91+g}, s90, 10")
        a(f"v_add_u32 v4, s{91+g}, v5\nds_read_b128 {V(OW+4*g,4)}, v4")
    a(f"v_and_b32 v4, 31, v0\ns_lshl_b32 s90, s81, 5\nv_add_u32 v4, s90, v4\nv_lshlrev_b32 v4, 3, v4\nv_add_u32 v4, {L_ST}, v4\nds_read_b64 v[10:11], v4")
    a(f"s_mov_b32 s{sIT2}, {BOUND}")
    a(f"L_FP_{tag}:")
    for g in range(3):
        a(f"s_add_u32 s90, s85, s{91+g}\nbuffer_load_dwordx4 {V(IN+12*g,4)}, v1, {S(SRD_WS)}, s90 offen sc1")
        a(f"s_add_u32 s90, s86, s{91+g}\nbuffer_load_dwordx4 {V(IN+12*g+4,4)}, v1, {S(SRD_WS)}, s90 offen sc1")
        a(f"s_add_u32 s90, s90, {20*1024}\nbuffer_load_dwordx4 {V(IN+12*g+8,4)}, v1, {S(SRD_WS)}, s90 offen sc1")
    a("s_waitcnt vmcnt(0)")
    a(f"v_mov_b32 v12, s{sNONCE}")
    first = True
    for g in range(3):
        for s_ in range(3):
            b = IN+12*g+4*s_
            a(f"v_xor_b32 v13, v12, v{b+1}\nv_xor_b32 v14, v12, v{b+3}")
            a("v_or_b32 v15, v13, v14" if first else "v_or3_b32 v15, v15, v13, v14"); first = False
    a("v_cmp_ne_u32 vcc, 0, v15")
    a(f"s_cbranch_vccz L_FP_{tag}_ok\ns_sub_u32 s{sIT2}, s{sIT2}, 1\ns_cmp_lg_u32 s{sIT2}, 0\ns_cbranch_scc1 L_FP_{tag}")
    a(f"L_FP_{tag}_ok:")
    a("s_waitcnt lgkmcnt(0)")
    srd(a, SRD_O, pOUT, SZ_OUT)
    a("v_mul_f32 v12, v10, v11\nv_sub_f32 v12, 0, v12\nv_mul_f32 v13, v11, v11")
    a("s_mov_b32 s94, 0x00003f80\ns_mov_b32 s95, 0x3f800000")
    a("v_mul_u32_u24 v6, 2560, v2\nv_lshrrev_b32 v3, 5, v0\nv_lshl_add_u32 v6, v3, 4, v6")
    W = 40
    for g in range(3):
        if g == 2: a(f"s_cmp_ge_u32 s{sW}, 4\ns_cbranch_scc1 L_FE_{tag}")
        A_, B_, C_ = IN+12*g, IN+12*g+4, IN+12*g+8
        U = OW+4*g ; Vv = W
        sel = ["s94", "s95"]
        for e in range(4):
            a(f"v_dot2_f32_bf16 v{U+e}, v{A_+2*(e>>1)}, {sel[e&1]}, v{U+e}")
        for e in range(4):
            a(f"v_dot2_f32_bf16 v{Vv+e}, v{B_+2*(e>>1)}, {sel[e&1]}, 0")
        for e in range(4):
            a(f"v_dot2_f32_bf16 v{Vv+e}, v{C_+2*(e>>1)}, {sel[e&1]}, v{Vv+e}")
        sreg, oreg = (Vv, U) if G else (U, Vv)
        X_, D_, B2 = W+4, W+8, W+12
        for (dst, src) in ((X_, PF+6*g), (D_, PF+6*g+2), (B2, PF+6*g+4)):
            a(f"v_lshlrev_b32 v{dst}, 16, v{src}\nv_and_b32 v{dst+1}, 0xffff0000, v{src}\nv_lshlrev_b32 v{dst+2}, 16, v{src+1}\nv_and_b32 v{dst+3}, 0xffff0000, v{src+1}")
        XN = W+16
        for e in range(4): a(f"v_fma_f32 v{XN+e}, v{X_+e}, v11, v12")
        for e in range(4): a(f"v_fmac_f32 v{sreg+e}, v{XN+e}, v{D_+e}")
        for e in range(4): a(f"v_fma_f32 v{oreg+e}, v{oreg+e}, v13, v{B2+e}")
        for e in range(4): a(f"v_mul_f32 v{XN+e}, 0xbfb8aa3b, v{oreg+e}")
        for e in range(4): a(f"v_exp_f32 v{XN+e}, v{XN+e}")
        for e in range(4): a(f"v_add_f32 v{XN+e}, 1.0, v{XN+e}")
        for e in range(4): a(f"v_rcp_f32 v{XN+e}, v{XN+e}")
        for e in range(4): a(f"v_mul_f32 v{oreg+e}, v{oreg+e}, v{XN+e}")
        O4 = W+20 + 4*(g & 1)
        for e in range(4): a(f"v_fma_f32 v{O4+e}, v{sreg+e}, v{oreg+e}, v{X_+e}")
        a(f"s_lshl_b32 s90, s{87+g}, 1")
        a(f"buffer_store_dwordx4 {V(O4,4)}, v6, {S(SRD_O)}, s90 offen")
    a(f"L_FE_{tag}:")
    a("s_endpgm")
```

```python
from gp_common import *
ONES="0x3f803f80"
def prologue(a):
    a("s_cmp_ge_u32 s2, 256\ns_cbranch_scc1 L_END")
    a("s_load_dwordx16 s[36:51], s[0:1], 0\ns_load_dwordx16 s[52:67], s[0:1], 64\ns_load_dwordx2 s[68:69], s[0:1], 128")
    a("v_lshrrev_b32 v1, 6, v0\nv_and_b32 v0, 63, v0")
    a(f"v_readfirstlane_b32 s{sW}, v1")
    a(f"""s_and_b32 s{sBR}, s2, 1
s_lshr_b32 s70, s2, 1
s_and_b32 s70, s70, 3
s_lshr_b32 s71, s2, 3
s_lshr_b32 s72, s71, 3
s_and_b32 s{sCG}, s71, 7
s_lshl_b32 s{sR}, s70, 2
s_add_u32 s{sR}, s{sR}, s72
s_lshr_b32 s{sKK}, s{sCG}, 2
s_and_b32 s{sDQ}, s{sCG}, 3
s_and_b32 s{sTG}, s{sW}, 3
s_lshr_b32 s{sCH}, s{sW}, 2""")
    a("s_waitcnt lgkmcnt(0)")
    srd(a, SRD_WS, pWS, SZ_WS); srd(a, SRD_X, pX, SZ_X)
    a(f"s_cmp_ge_u32 s{sW}, 8\ns_cbranch_scc1 L_LOADER")

def row_load(a, vb, srdn, soff):
    a(f"buffer_load_dwordx4 {V(vb,4)}, v1, {S(srdn)}, s{soff} offen")
    a(f"buffer_load_dword v{vb+4}, v2, {S(srdn)}, s{soff} offen")
def row_sum(a, vb, dst):
    a(f"v_mov_b32 v{dst}, 0")
    for i in range(5): a(f"v_dot2_f32_bf16 v{dst}, v{vb+i}, s70, v{dst}")

def side_issue_common(a):
    a(f"buffer_load_dword v3, off, {S(SRD_WS)}, 0 sc1")
    a("v_lshlrev_b32 v1, 4, v0\nv_lshlrev_b32 v2, 2, v0\nv_add_u32 v2, 1024, v2")
    a(f"s_lshl_b32 s70, s{sBR}, 3\ns_add_u32 s70, s70, s{sCG}\ns_lshl_b32 s70, s70, 3\ns_add_u32 s70, s70, s{sW}")
    a(f"s_lshl_b32 s71, s{sR}, 7\ns_add_u32 s74, s70, s71")
    a("s_mul_i32 s71, s74, 1280")
    row_load(a, 4, SRD_X, 71)
    a(f"s_lshr_b32 s70, s2, 1\ns_xor_b32 s71, s{sBR}, 1\ns_lshl_b32 s71, s71, 7\ns_add_u32 s70, s70, s71")
    a(f"s_lshl_b32 s70, s70, 3\ns_add_u32 s75, s70, s{sW}")
    a("s_cmp_ge_u32 s75, 1600\ns_cbranch_scc1 L_NOREP1")
    a("s_mul_i32 s76, s75, 5243\ns_lshr_b32 s76, s76, 17")
    a("s_mul_i32 s77, s76, 25\ns_sub_u32 s77, s75, s77")
    a("s_cmp_ge_u32 s77, 15\ns_cselect_b32 s78, 1, 0")
    a("s_mul_i32 s79, s78, 15\ns_sub_u32 s77, s77, s79")
    a("s_mul_i32 s79, s77, 52\ns_lshr_b32 s79, s79, 8")
    a("s_mul_i32 s80, s79, 5\ns_sub_u32 s80, s77, s80")
    a("s_and_b32 s81, s76, 1")
    a("s_mul_i32 s82, s81, 3\ns_lshl_b32 s83, s81, 1\ns_add_u32 s83, s83, 6\ns_cmp_eq_u32 s78, 1\ns_cselect_b32 s82, s83, s82\ns_add_u32 s82, s82, s79")
    a("s_lshr_b32 s83, s76, 1\ns_and_b32 s83, s83, 3")
    a("s_lshr_b32 s84, s76, 3\ns_and_b32 s84, s84, 3")
    a("s_lshr_b32 s85, s76, 5")
    a("s_mul_i32 s85, s85, 320\ns_mul_i32 s83, s83, 80\ns_add_u32 s85, s85, s83\ns_lshl_b32 s82, s82, 3\ns_add_u32 s85, s85, s82")
    a("s_mul_i32 s84, s84, 160\ns_lshl_b32 s80, s80, 5\ns_add_u32 s84, s84, s80")
    a("s_mul_i32 s84, s84, 1280\ns_lshl_b32 s85, s85, 1\ns_add_u32 s84, s84, s85")
    srd(a, SRD_A, pCRE, SZ_BC); srd(a, SRD_B, pCIM, SZ_BC)
    a("v_and_b32 v9, 31, v0\nv_mul_u32_u24 v9, 1280, v9\nv_lshrrev_b32 v10, 5, v0\nv_lshl_add_u32 v9, v10, 3, v9")
    a(f"buffer_load_dwordx2 v[10:11], v9, {S(SRD_A)}, s84 offen\nbuffer_load_dwordx2 v[12:13], v9, {S(SRD_B)}, s84 offen")
    a("L_NOREP1:")

def stats_finish(a):
    a(f"s_mov_b32 s70, {ONES}")
    row_sum(a, 4, 14)
    wave_reduce(a, [14])
    a("v_readlane_b32 s71, v14, 63")
    a("v_mov_b32 v15, 0x3acccccd\nv_mul_f32 v14, s71, v15")
    a("v_mov_b32 v15, 0")
    for i in range(5):
        a(f"v_lshlrev_b32 v16, 16, v{4+i}\nv_and_b32 v17, 0xffff0000, v{4+i}")
        a("v_sub_f32 v16, v16, v14\nv_sub_f32 v17, v17, v14\nv_fmac_f32 v15, v16, v16\nv_fmac_f32 v15, v17, v17")
    wave_reduce(a, [15])
    a("v_readlane_b32 s71, v15, 63")
    a("v_mov_b32 v15, 0x3acccccd\nv_mov_b32 v16, 0x3727c5ac\nv_fma_f32 v15, s71, v15, v16")
    a("v_rsq_f32 v15, v15")
    a("v_mov_b32 v16, v14\nv_mov_b32 v17, v15")
    a(f"s_lshl_b32 s71, s74, 3\ns_add_u32 s71, s71, {WS_STATS}")
    a("s_mov_b64 exec, 1")
    a(f"buffer_store_dwordx2 v[16:17], off, {S(SRD_WS)}, s71 sc1")
    a("s_mov_b64 exec, -1")

def crep_finish(a):
    lb = a.lab("L_NOREP2")
    a(f"s_cmp_ge_u32 s75, 1600\ns_cbranch_scc1 {lb}")
    a("s_mov_b32 s70, 0x05040100\ns_mov_b32 s71, 0x07060302")
    a("v_perm_b32 v20, v12, v10, s70\nv_perm_b32 v21, v12, v10, s71\nv_perm_b32 v22, v13, v11, s70\nv_perm_b32 v23, v13, v11, s71")
    a(f"s_lshl_b32 s71, s75, 10\ns_add_u32 s71, s71, {WS_CREP}")
    a(f"buffer_store_dwordx4 v[20:23], v1, {S(SRD_WS)}, s71 offen sc1")
    a(f"{lb}:")

def side_G(a):
    srd(a, SRD_C, pW1, SZ_W1)
    a(f"s_mul_i32 s70, s{sR}, 40\ns_mul_i32 s71, s{sW}, 5\ns_add_u32 s70, s70, s71\ns_mul_i32 s70, s70, 3072\ns_mul_i32 s71, s{sCG}, 384\ns_add_u32 s70, s70, s71")
    a("v_lshlrev_b32 v18, 3, v0")
    a("s_mov_b32 exec_lo, -1\ns_mov_b32 exec_hi, 0xffff")
    for i in range(5):
        a(f"buffer_load_dwordx2 v[{24+2*i}:{25+2*i}], v18, {S(SRD_C)}, s70 offen")
        if i < 4: a("s_add_u32 s70, s70, 3072")
    a("s_mov_b64 exec, -1")
    a("s_waitcnt vmcnt(5)")
    a(f"v_readfirstlane_b32 s{sNONCE}, v3")
    a(f"s_mul_i32 s{sNONCE}, s{sNONCE}, 1664525\ns_add_u32 s{sNONCE}, s{sNONCE}, 1013904223")
    crep_finish(a)
    stats_finish(a)
    a("s_waitcnt vmcnt(2)")
    a("s_mov_b32 s70, 0x00003f80\ns_mov_b32 s71, 0x3f800000")
    a("v_mov_b32 v36, 0\nv_mov_b32 v37, 0\nv_mov_b32 v38, 0\nv_mov_b32 v39, 0")
    for i in range(5):
        a(f"v_dot2_f32_bf16 v36, v{24+2*i}, s70, v36\nv_dot2_f32_bf16 v37, v{24+2*i}, s71, v37")
        a(f"v_dot2_f32_bf16 v38, v{25+2*i}, s70, v38\nv_dot2_f32_bf16 v39, v{25+2*i}, s71, v39")
    a(f"s_mul_i32 s70, s{sW}, 768\ns_add_u32 s70, s70, {L_CSST}\nv_add_u32 v18, s70, v1")
    a("s_mov_b32 exec_lo, -1\ns_mov_b32 exec_hi, 0xffff")
    a("ds_write_b128 v18, v[36:39]")
    a("s_mov_b64 exec, -1")

def css_row(a, rowreg, vb, tag):
    a(f"s_cmp_ge_u32 s{rowreg}, 80\ns_cselect_b32 s70, 1, 0\ns_cselect_b64 s[{SRD_C}:{SRD_C+1}], s[{pBIM}:{pBIM+1}], s[{pBRE}:{pBRE+1}]")
    a(f"s_mov_b32 s{SRD_C+2}, {SZ_BC}\ns_mov_b32 s{SRD_C+3}, 0x20000")
    a(f"s_mul_i32 s71, s70, 80\ns_sub_u32 s{rowreg}, s{rowreg}, s71\ns_mul_i32 s71, s{sCG}, 80\ns_add_u32 s{rowreg}, s{rowreg}, s71")
    a(f"s_mul_i32 s71, s{rowreg}, 1280")
    row_load(a, vb, SRD_C, 71)
    a(f"s_mul_i32 s70, s70, 640\ns_add_u32 s{rowreg}, s{rowreg}, s70")
def css_fin(a, rowreg, vb, dst):
    a(f"v_readlane_b32 s71, v{dst}, 63")
    a(f"s_lshl_b32 s72, s{rowreg}, 2\ns_add_u32 s72, s72, {WS_CSS}")
    a(f"v_mov_b32 v{dst}, s71")
    a("s_mov_b64 exec, 1")
    a(f"buffer_store_dword v{dst}, off, {S(SRD_WS)}, s72 sc1")
    a("s_mov_b64 exec, -1")

KC=96
def side_S(a):
    a(f"s_mul_i32 s86, s{sR}, 10\ns_add_u32 s86, s86, s{sW}")
    css_row(a, 86, 24, "a")
    a(f"s_cmp_ge_u32 s{sW}, 2\ns_cbranch_scc1 L_S_NOROW2")
    a(f"s_mul_i32 s87, s{sR}, 10\ns_add_u32 s87, s87, s{sW}\ns_add_u32 s87, s87, 8")
    css_row(a, 87, 30, "b")
    a("L_S_NOROW2:")
    a(f"s_mul_i32 s70, s{sCG}, 80\ns_mul_i32 s71, s{sCH}, 48\ns_add_u32 s70, s70, s71")
    a("v_and_b32 v18, 31, v0\nv_lshrrev_b32 v18, 1, v18\nv_add_u32 v18, s70, v18\nv_lshlrev_b32 v18, 1, v18")
    for st in range(3):
        a(f"v_add_u32 v19, {32*st}, v18\nv_min_u32 v19, 1278, v19")
        a(f"global_load_ushort v{36+3*st}, v19, s[{pLRE}:{pLRE+1}]\nglobal_load_ushort v{37+3*st}, v19, s[{pLIM}:{pLIM+1}]\nglobal_load_ushort v{38+3*st}, v19, s[{pLDT}:{pLDT+1}]")
    a("s_waitcnt vmcnt(9)")
    a(f"v_readfirstlane_b32 s{sNONCE}, v3")
    a(f"s_mul_i32 s{sNONCE}, s{sNONCE}, 1664525\ns_add_u32 s{sNONCE}, s{sNONCE}, 1013904223")
    crep_finish(a)
    stats_finish(a)
    a(f"s_mov_b32 s70, {ONES}")
    row_sum(a, 24, 14); wave_reduce(a, [14]); css_fin(a, 86, 24, 14)
    a(f"s_cmp_ge_u32 s{sW}, 2\ns_cbranch_scc1 L_S_NOROW2b")
    row_sum(a, 30, 14); wave_reduce(a, [14]); css_fin(a, 87, 30, 14)
    a("L_S_NOROW2b:")
    a("s_waitcnt vmcnt(2)")
    a("v_and_b32 v18, 1, v0\nv_lshlrev_b32 v18, 31, v18\nv_or_b32 v18, 0x3f800000, v18")
    for st in range(3):
        lre, lim, ldt = 36+3*st, 37+3*st, 38+3*st
        ar, kA, k1, k2 = KC+4*st, KC+4*st+1, KC+4*st+2, KC+4*st+3
        a(f"v_lshlrev_b32 v{lre}, 16, v{lre}\nv_lshlrev_b32 v{lim}, 16, v{lim}\nv_lshlrev_b32 v{ldt}, 16, v{ldt}")
        a(f"v_mul_f32 v{ldt}, 0x3fb8aa3b, v{ldt}\nv_exp_f32 v{ldt}, v{ldt}")
        a(f"v_cvt_pk_bf16_f32 v{ldt}, v{ldt}, v{ldt}\nv_lshlrev_b32 v{ldt}, 16, v{ldt}")
        a(f"v_mul_f32 v19, v{ldt}, v{lre}\nv_mul_f32 v20, v{ldt}, v{lim}")
        a("v_mul_f32 v19, 0x3fb8aa3b, v19\nv_exp_f32 v19, v19")
        a("v_mul_f32 v20, 0.15915494, v20\nv_rndne_f32 v21, v20\nv_sub_f32 v20, v20, v21")
        a("v_cos_f32 v21, v20\nv_sin_f32 v22, v20")
        a(f"v_mul_f32 v{ar}, v19, v21\nv_mul_f32 v22, v19, v22")
        a(f"v_add_f32 v21, -1.0, v{ar}")
        a(f"v_mul_f32 v23, v{lre}, v{lre}\nv_fmac_f32 v23, v{lim}, v{lim}\nv_rcp_f32 v23, v23")
        a(f"v_mul_f32 v19, v21, v{lre}\nv_fmac_f32 v19, v22, v{lim}")
        a(f"v_mul_f32 v20, v22, v{lre}\nv_fma_f32 v20, -v21, v{lim}, v20")
        a("v_add_f32 v23, v23, v23")
        a(f"v_mul_f32 v19, v19, v23\nv_mul_f32 v20, v20, v23")
        a(f"v_mul_f32 v{k1}, v19, v18\nv_sub_f32 v{k2}, 0, v20\nv_mul_f32 v{kA}, v22, v18")
        a(f"v_mov_b32 v19, v{ar}\nv_mov_b32 v20, v22")
        for _ in range(4):
            a("v_mul_f32 v21, v20, v20\nv_mul_f32 v23, v19, v20\nv_fma_f32 v19, v19, v19, -v21\nv_add_f32 v20, v23, v23")
        a(f"v_mov_b32 v22, v19\nv_mov_b32 v23, v20")
        if st == 2: a(f"s_cmp_eq_u32 s{sCH}, 1\ns_cbranch_scc1 L_S_NOA16")
        a(f"s_mul_i32 s70, s{sCH}, 96\ns_add_u32 s70, s70, {32*st}\ns_lshl_b32 s70, s70, 3\ns_add_u32 s70, s70, {L_A16}")
        a("v_and_b32 v21, 31, v0\nv_lshl_add_u32 v21, v21, 3, s70")
        a("ds_write_b64 v21, v[22:23]")
        if st == 2: a("L_S_NOA16:")
```

```python
import re
VCC=(106,107); EXEC=(126,127); M0=124
TRANS = ("v_exp_f32","v_log_f32","v_rcp_f32","v_rsq_f32","v_sqrt_f32","v_sin_f32","v_cos_f32","v_rcp_iflag_f32")
def regs_of(tok):
    tok = tok.strip()
    neg = tok.lstrip('-').strip('|')
    m = re.fullmatch(r'([vsa])\[(\d+):(\d+)\]', neg)
    if m: return [(m.group(1), i) for i in range(int(m.group(2)), int(m.group(3))+1)]
    m = re.fullmatch(r'([vsa])(\d+)', neg)
    if m: return [(m.group(1), int(m.group(2)))]
    if neg == 'vcc': return [('s',106),('s',107)]
    if neg == 'vcc_lo': return [('s',106)]
    if neg == 'exec': return [('s',126),('s',127)]
    if neg == 'm0': return [('s',124)]
    return []
class I:
    __slots__=("text","op","dst","src","valu","mfma","trans","dot","dpp","vmem","ds","perm","nop","label","branch","target","uncond","wide_store","passes","srcC","srcAB","ldslds","rl","salu","cnd","sdwa")
def parse(line):
    i = I(); i.text = line
    s = line.split(';')[0].split('//')[0].strip()
    i.label=None; i.op=None; i.dst=set(); i.src=set(); i.nop=0; i.branch=False; i.target=None; i.uncond=False
    i.valu=i.mfma=i.trans=i.dot=i.dpp=i.vmem=i.ds=i.perm=i.wide_store=i.ldslds=i.rl=i.salu=i.cnd=i.sdwa=False; i.passes=0; i.srcC=set(); i.srcAB=set()
    if not s or s.startswith('.'): return i
    if s.endswith(':'): i.label = s[:-1]; return i
    parts = s.split(None, 1); op = parts[0]; i.op = op
    rest = parts[1] if len(parts) > 1 else ""
    ops = [o.strip() for o in rest.split(',')] if rest else []
    mods = ""
    if ops:
        l = ops[-1].split(None, 1)
    rest2 = re.sub(r'(quad_perm|op_sel|op_sel_hi|neg_lo|neg_hi):\[[^\]]*\]', lambda m: m.group(1), rest)
    ops = [o.strip() for o in rest2.split(',')] if rest2 else []
    if ops:
        l = ops[-1].split(None, 1); ops[-1] = l[0]; mods = l[1] if len(l) > 1 else ""
    R = [regs_of(o) for o in ops]
    if op == 's_nop': i.nop = int(ops[0], 0); return i
    if op in ('s_branch',) or op.startswith('s_cbranch'):
        i.branch = True; i.target = ops[0]; i.uncond = (op == 's_branch'); return i
    if op == 's_endpgm': i.uncond = True; i.branch=True; return i
    if op.startswith('v_mfma'):
        i.mfma = True; i.dst = set(R[0]); i.srcAB = set(R[1]) | set(R[2]); i.srcC = set(R[3]); i.src = i.srcAB | i.srcC
        i.passes = 8 if '32x32' in op else 4
        return i
    if op.startswith('v_'):
        i.valu = True
        i.trans = any(op.startswith(t) for t in TRANS)
        i.dot = op.startswith('v_dot')
        i.dpp = ('quad_perm' in line or 'row_' in line or 'wave_' in line or '_dpp' in op)
        i.sdwa = 'sdwa' in op or 'dst_sel' in line
        i.perm = op.startswith('v_permlane')
        i.rl = op.startswith('v_readlane') or op.startswith('v_readfirstlane') or op.startswith('v_writelane')
        i.dst = set(R[0]); src = set()
        for r in R[1:]: src |= set(r)
        if i.perm: i.dst |= set(R[1]); src |= set(R[0])
        if op.startswith(('v_fmac','v_mac','v_dot2c','v_writelane','v_pk_fmac')) or i.dpp: src |= set(R[0])
        if op.startswith(('v_add_co','v_sub_co','v_addc','v_subb')): i.dst |= set(R[1])
        if op.startswith('v_cndmask'):
            i.cnd = True
            if len(R) == 3: src |= {('s',106),('s',107)}
        if op.startswith('v_cmpx'): i.dst |= {('s',126),('s',127)}
        i.src = src
        return i
    if op.startswith(('buffer_','global_')):
        i.vmem = True
        islds = bool(re.search(r'\blds\b', mods)) or 'load_lds' in op
        i.ldslds = islds
        allr = set()
        for r in R: allr |= set(r)
        if 'load' in op and not islds:
            i.dst = set(R[0]); s2 = set()
            for r in R[1:]: s2 |= set(r)
            i.src = s2
        else:
            i.src = allr
            if 'store' in op and ('x3' in op or 'x4' in op):
                i.wide_store = True
                i.srcC = set(R[0]) if op.startswith('buffer') else set(R[1])
        if islds: i.src |= {('s',124)}
        return i
    if op.startswith('ds_'):
        i.ds = True
        if op.startswith(('ds_read','ds_bpermute','ds_permute','ds_swizzle')):
            i.dst = set(R[0]); s2=set()
            for r in R[1:]: s2 |= set(r)
            i.src = s2
        else:
            s2=set()
            for r in R: s2 |= set(r)
            i.src = s2
        return i
    if op.startswith('s_'):
        i.salu = True
        if op.startswith(('s_cmp','s_waitcnt','s_barrier','s_sleep','s_setprio','s_bitcmp')):
            s2=set()
            for r in R: s2 |= set(r)
            i.src = s2
        else:
            i.dst = set(R[0]) if R else set(); s2=set()
            for r in R[1:]: s2 |= set(r)
            i.src = s2
            if 'saveexec' in op: i.dst |= {('s',126),('s',127)}
        return i
    return i
def vg(s): return {r for r in s if r[0] in 'va'}
def sg(s): return {r for r in s if r[0]=='s'}
def need(p, c):
    n = 0
    pv = vg(p.dst)
    if p.valu:
        if c.mfma and pv & c.src: n = max(n, 2)
        if c.valu and c.dpp and pv & vg(c.src): n = max(n, 2)
        if c.valu and c.perm and pv & vg(c.src): n = max(n, 2)
        if c.valu and c.rl and pv & vg(c.src): n = max(n, 1)
        if p.trans and (c.valu) and pv & (vg(c.src)|vg(c.dst)): n = max(n, 1)
        if p.dot and (c.valu or c.vmem or c.ds or c.mfma) and pv & (vg(c.src)|vg(c.dst)):
            n = max(n, 3)
        if p.sdwa and c.valu and pv & (vg(c.src)|vg(c.dst)): n = max(n,1)
        ps = sg(p.dst)
        if ps:
            if c.vmem and ps & c.src: n = max(n, 5)
            if c.valu and ps & sg(c.src): n = max(n, 4 if c.rl else 2)
            if ps & {('s',126),('s',127)}:
                if c.valu and c.dpp: n = max(n, 5)
                if c.mfma or c.rl or c.perm: n = max(n, 4)
    if p.mfma:
        big = p.passes == 8
        if c.mfma:
            if p.dst & c.srcAB: n = max(n, 12 if big else 8)
            if p.dst & c.srcC and not (p.dst == c.srcC and p.passes == c.passes): n = max(n, 10 if big else 6)
        elif c.valu or c.vmem or c.ds:
            if p.dst & (vg(c.src) | vg(c.dst)): n = max(n, 12 if big else 8)
            if c.valu and p.srcC & vg(c.dst): n = max(n, 7 if big else 3)
    if p.vmem and p.wide_store:
        if (c.valu) and p.srcC & vg(c.dst): n = max(n, 2)
        elif (c.vmem or c.ds or c.mfma) and p.srcC & vg(c.dst): n = max(n, 1)
    if p.salu and ('s',124) in p.dst and (c.vmem and c.ldslds): n = max(n, 1)
    return n
def fix(text, verbose=False):
    ins = [parse(l) for l in text.split('\n')]
    out = []
    labels = {}
    for k, i in enumerate(ins):
        if i.label: labels[i.label] = k
    srcs = {}
    for k, i in enumerate(ins):
        if i.branch and i.target in labels: srcs.setdefault(labels[i.target], []).append(k)
    extra = [0]*len(ins)
    def states(k):
        i = ins[k]
        if i.op is None: return 0
        if i.op == 's_nop': return i.nop + 1
        return 1
    MAXD = 14
    def check(k):
        c = ins[k]
        if c.op is None or c.op == 's_nop': return 0
        req = 0
        stack = []; seen = {}
        def push_preds(pos, dist):
            if ins[pos].label and pos in srcs:
                for b in srcs[pos]: stack.append((b, dist))
            p = pos - 1
            if p >= 0 and not (ins[p].op and ins[p].uncond): stack.append((p, dist))
        push_preds(k, extra[k])
        while stack:
            pos, dist = stack.pop()
            if dist >= MAXD: continue
            if seen.get(pos, 99) <= dist: continue
            seen[pos] = dist
            p = ins[pos]
            if p.op is not None and p.op != 's_nop':
                n = need(p, c)
                if n > dist: req = max(req, n - dist)
            nd = dist + states(pos) + extra[pos]
            push_preds(pos, nd)
        return req
    changed = True; it = 0
    while changed and it < 5:
        changed = False; it += 1
        for k in range(len(ins)):
            r = check(k)
            if r > 0:
                extra[k] += r; changed = True
    res = []; tot = 0
    for k, i in enumerate(ins):
        e = extra[k]
        tot += e
        while e > 0:
            t = min(e, 16); res.append(f"s_nop {t-1}"); e -= t
        res.append(i.text)
    if verbose: print("hazard nops inserted (states):", tot)
    return '\n'.join(res)
if __name__ == "__main__":
    t = """v_mov_b32 v1, 0
v_mfma_f32_32x32x16_bf16 v[16:31], v[0:3], v[4:7], v[16:31]
v_add_f32 v2, v16, v3
v_fmac_f32_dpp v2, v2, v3 quad_perm:[1,0,3,2] row_mask:0xf bank_mask:0xf
v_readfirstlane_b32 s4, v2
buffer_load_dwordx4 v3, s[8:11], s4 offen lds
L1:
v_exp_f32 v5, v5
s_cbranch_scc1 L2
v_mul_f32 v6, v5, v5
L2:
v_mul_f32 v7, v5, v5
"""
    print(fix(t, True))
```

```python
import sys
from gp_common import *
import gp_stage1 as s1, gp_loader as ld, gp_compute as cp, gp_phase2 as p2
from hazard import fix
def gen(stop=None, barpos=1):
    a = Asm()
    kernel_begin(a, K)
    s1.prologue(a)
    s1.side_issue_common(a)
    a(f"s_cmp_eq_u32 s{sBR}, 1\ns_cbranch_scc1 L_CG")
    s1.side_S(a)
    cp.p1_init(a, False)
    a(f"s_cmp_eq_u32 s{sCH}, 1\ns_cbranch_scc1 L_CS1")
    for ch in range(2):
        if ch: a("L_CS1:")
        NS = 3 - ch
        cp.p1_loop(a, False, NS, f"S{ch}", barpos)
        if stop == "p1":
            a("s_barrier\ns_endpgm"); continue
        cp.epi_S(a, NS, f"S{ch}")
        if stop == "epi":
            cp.publish_flag(a, 0); a("s_waitcnt vmcnt(0)\ns_endpgm"); continue
        p2.phase2(a, False, ch, f"S{ch}")
        if ch == 0: a("s_branch L_FIN_S")
    if stop is None:
        a("L_FIN_S:")
        p2.final(a, False, "S")
    a("L_CG:")
    s1.side_G(a)
    cp.p1_init(a, True)
    cp.p1_loop(a, True, 3, "G", barpos)
    if stop == "p1": a("s_barrier\ns_endpgm")
    else:
        cp.epi_G(a)
        if stop == "epi":
            cp.publish_flag(a, 1); a("s_waitcnt vmcnt(0)\ns_endpgm")
        else:
            p2.phase2(a, True, 0, "G")
            p2.final(a, True, "G")
    a("L_LOADER:")
    a(f"s_cmp_eq_u32 s{sBR}, 1\ns_cbranch_scc1 L_LOADER_G")
    ld.loader(a, False, stop)
    ld.loader(a, True, stop)
    a("L_END:\ns_endpgm")
    body = fix(a.text(), True)
    d = Asm(); kernel_desc(d, K, 168, accum=168)
    return assemble_file([(K, (256,1,1), (768,1,1), 163840)], body, d.text())
if __name__ == "__main__":
    stop = sys.argv[2] if len(sys.argv) > 2 and sys.argv[2] != "none" else None
    open(sys.argv[1], "w").write(gen(stop))
```

```python
from asmlib import *
K = NAME + "_kernel"
WS_NONCE=0x0; WS_F0=0x1000; WS_STATS=0x2000; WS_CSS=0xA000; WS_XCC=0xE000; WS_CSG=0x60000; WS_EG=0x20000
WS_F1=0x48000; WS_CREP=0x100000; WS_T=0x300000; WS_X=0x1000000; WS_F2=0x90000; WS_DBG=0x4000000
SLOT=40960
L_W0=122880
L_ESEG=148480
L_CSST=122880
L_TAB=153600
L_TT=L_TAB
L_TZ=L_TT+2048
L_WT=L_TAB+2304
L_ST=L_WT+3072
L_KC=L_ST+1024
L_DB=L_KC+2560
L_RS=L_DB+640
L_FLG=L_RS+512
L_END=L_FLG+16
assert L_END <= 163840
P2SLOT={True:[122880,0,30720,61440,92160], False:[122880,0,25600,51200,76800]}
L_TR=81920
sLOC=96; sWG=2; sW=3; sBR=4; sR=5; sCG=6; sTG=7; sCH=8; sKK=9; sDQ=10; sNONCE=11
SRD_WS=12; SRD_X=16; SRD_A=20; SRD_B=24; SRD_C=28; SRD_O=32
pX=36; pLRE=38; pLIM=40; pBRE=42; pBIM=44; pCRE=46; pCIM=48; pLDT=50; pDSK=52; pBX=54; pW1=56; pB1=58; pW2=60; pB2=62; pOUT=64; pDBG=66; pWS=68
SZ_X=2048*1280; SZ_BC=640*1280; SZ_W1=640*3072; SZ_W2=1536*1280; SZ_OUT=2048*2560; SZ_WS=0x10000000
def srd(a, d, p, size):
    a(f"s_mov_b32 s{d}, s{p}\ns_mov_b32 s{d+1}, s{p+1}\ns_mov_b32 s{d+2}, {size}\ns_mov_b32 s{d+3}, 0x20000")
def S(d): return f"s[{d}:{d+3}]"
def V(b, n): return f"v[{b}:{b+n-1}]" if n > 1 else f"v{b}"
def wave_reduce(a, regs):
    for ctl in ["row_shr:1 row_mask:0xf bank_mask:0xf bound_ctrl:1","row_shr:2 row_mask:0xf bank_mask:0xf bound_ctrl:1",
                "row_shr:4 row_mask:0xf bank_mask:0xf bound_ctrl:1","row_shr:8 row_mask:0xf bank_mask:0xf bound_ctrl:1",
                "row_bcast:15 row_mask:0xa bank_mask:0xf","row_bcast:31 row_mask:0xc bank_mask:0xf"]:
        for r in regs:
            a(f"v_add_f32_dpp v{r}, v{r}, v{r} {ctl}")

class PROF:
    on=False; mode=0; inld=False
TSREG=[0,1,54,55,66,67,28,97,98,99,38,39,40,41,50,51]
def ts(a,k,force=False):
    if OPT.p2ts and not force and not PROF.inld and k in (1,2,3,4,5,10,11): return
    if PROF.mode==1 and not force and k in (7,8,9,10,11,12,13,14) and PROF.inld: return
    if PROF.on: a(f"s_memrealtime s[100:101]\ns_waitcnt lgkmcnt(0)\ns_mov_b32 s{TSREG[k]}, s100")
def endpgm(a):
    if PROF.on:
        for k,r in enumerate(TSREG): a(f"v_writelane_b32 v20, s{r}, {k}")
        a(f"s_mul_i32 s70, s2, 12\ns_add_u32 s70, s70, s{sW}\ns_lshl_b32 s70, s70, 6\ns_add_u32 s70, s70, {WS_DBG}\nv_lshlrev_b32 v21, 2, v0\ns_mov_b32 exec_lo, 0xffff\ns_mov_b32 exec_hi, 0")
        a(f"buffer_store_dword v20, v21, {S(SRD_WS)}, s70 offen\ns_waitcnt vmcnt(0)")
    a("s_endpgm")

class OPT:
    touch=0
    touchw2=4
    nocomp=0
    noload=0
    rot=1
    touchc=1
    local=1
    cpoll=4
    exwarm=0
    exsleep=2
    p2poll=4
    p2d2=0
    tsc=3
    isc=3
    wnt=2
    codepf=0
    tq0=1
    tqr=3
    p2ts=0
    pfj=5
    outsc=0
    locx=1
    nocrep=0
    crepit=1
    f0late=1
```

```python
from gp_common import *
from gp_stage1 import KC, colsum_reduce_G, crep_finish
FA=16; FB=32; ACC1=48
AX=4
AW=8
sIT=70; sSL=71; sDL=72; sT=73; sT2=74
MF="v_mfma_f32_32x32x16_bf16"
def pi_lane(a, dst, t):
    a(f"v_and_b32 v{dst}, 3, v0\nv_bfe_u32 v{t}, v0, 2, 1\nv_lshl_add_u32 v{dst}, v{t}, 4, v{dst}\nv_bfe_u32 v{t}, v0, 3, 2\nv_lshl_add_u32 v{dst}, v{t}, 2, v{dst}")
def p1_init(a, G):
    if G: a("v_and_b32 v12, 31, v0")
    else: pi_lane(a, 12, 13)
    a(f"v_bfe_u32 v13, v12, 1, 3")
    a(f"s_lshl_b32 s{sT}, s{sTG}, 5\nv_add_u32 v12, s{sT}, v12\nv_lshlrev_b32 v12, 7, v12")
    a(f"v_lshrrev_b32 v14, 5, v0\nv_xor_b32 v13, v13, v14\nv_lshl_add_u32 v12, v13, 4, v12")
    a(f"v_add_u32 v{AX}, {2*SLOT}, v12")
    for ks in range(1, 4): a(f"v_xor_b32 v{AX+ks}, {32*ks}, v{AX}")
    if G:
        a("v_bfe_u32 v12, v0, 2, 2\nv_lshrrev_b32 v13, 5, v0\nv_lshl_add_u32 v13, v13, 3, v12\nv_mul_u32_u24 v13, 384, v13")
        a("v_bfe_u32 v14, v0, 4, 1\nv_lshl_add_u32 v13, v14, 5, v13\nv_and_b32 v14, 3, v0\nv_lshl_add_u32 v13, v14, 3, v13")
        a(f"v_add_u32 v13, {2*SLOT+16384}, v13")
        a("v_bfe_u32 v14, v0, 3, 1")
        for st in range(3):
            a(f"s_mul_i32 s{sT}, s{sCH}, 3\ns_add_u32 s{sT}, s{sT}, {st}")
            a(f"v_xor_b32 v15, s{sT}, v14\nv_lshl_add_u32 v{AW+st}, v15, 6, v13")
    else:
        a("v_bfe_u32 v12, v0, 1, 3\nv_and_b32 v13, 1, v0\nv_lshl_add_u32 v12, v13, 3, v12\nv_bfe_u32 v13, v0, 4, 1\nv_lshl_add_u32 v12, v13, 4, v12")
        a("v_bfe_u32 v13, v12, 1, 3\nv_lshrrev_b32 v14, 5, v0\nv_xor_b32 v13, v13, v14\nv_lshlrev_b32 v12, 7, v12\nv_lshl_add_u32 v12, v13, 4, v12")
        a(f"s_mul_i32 s{sT}, s{sCH}, {3*4096}\ns_add_u32 s{sT}, s{sT}, {2*SLOT+16384}\nv_add_u32 v{AW}, s{sT}, v12")
        for ks in range(1, 4): a(f"v_xor_b32 v{AW+ks}, {32*ks}, v{AW}")
    for i in range(48): a(f"v_mov_b32 v{ACC1+i}, 0")
def p1_reads(G, NS, ks, fs):
    if OPT.nocomp & 1: return []
    r = [f"ds_read_b128 {V(fs,4)}, v{AX+ks}"]
    for st in range(NS):
        if G:
            r.append(f"ds_read_b64_tr_b16 {V(fs+4+4*st,2)}, v{AW+st} offset:{ks*6144}")
            r.append(f"ds_read_b64_tr_b16 {V(fs+6+4*st,2)}, v{AW+st} offset:{ks*6144+1536}")
        else:
            r.append(f"ds_read_b128 {V(fs+4+4*st,4)}, v{AW+ks} offset:{4096*st}")
    return r
def p1_mfma(G, st, fs):
    if OPT.nocomp & 2: return "s_nop 0"
    acc = V(ACC1+16*st, 16)
    if G: return f"{MF} {acc}, {V(fs+4+4*st,4)}, {V(fs,4)}, {acc}"
    return f"{MF} {acc}, {V(fs,4)}, {V(fs+4+4*st,4)}, {acc}"
def interleave(a, mf, reads):
    n = len(mf); per = -(-len(reads)//max(1, n-1)) if n > 1 else len(reads)
    k = 0
    for i, m in enumerate(mf):
        a(m)
        if i < n-1 or n == 1:
            for r in reads[k:k+per]: a(r)
            k += per
    for r in reads[k:]: a(r)
def p1_loop(a, G, NS, tag, barpos=1):
    nadr = 7 if G else 8
    adr = [AX+i for i in range(4)] + [AW+i for i in range(3 if G else 4)]
    ts(a,1)
    a("s_waitcnt lgkmcnt(0)\ns_barrier")
    ts(a,2)
    for r in p1_reads(G, NS, 0, FA): a(r)
    if G: colsum_reduce_G(a)
    a(f"s_mov_b32 s{sIT}, 0\ns_mov_b32 s{sSL}, 2")
    a(f"L_P1_{tag}:")
    sets = [FA, FB]
    for ks in range(3):
        a("s_waitcnt lgkmcnt(0)")
        rd = p1_reads(G, NS, ks+1, sets[(ks+1) & 1])
        interleave(a, [p1_mfma(G, st, sets[ks & 1]) for st in range(NS)], rd)
        if ks == 2:
            a(f"s_mov_b32 s{sDL}, {SLOT}\ns_cmp_eq_u32 s{sSL}, 2\ns_cselect_b32 s{sDL}, {(-2*SLOT) & 0xffffffff}, s{sDL}\ns_cselect_b32 s{sSL}, -1, s{sSL}\ns_add_u32 s{sSL}, s{sSL}, 1")
            for r in adr: a(f"v_add_u32 v{r}, s{sDL}, v{r}")
    a("s_waitcnt lgkmcnt(0)")
    mf = [p1_mfma(G, st, FB) for st in range(NS)]
    for m in mf[:barpos]: a(m)
    a(f"s_cmp_eq_u32 s{sIT}, 9\ns_cbranch_scc1 L_P1_{tag}_last")
    if G:
        a(f"s_cmp_lg_u32 s{sIT}, 1\ns_cbranch_scc1 L_P1_{tag}_nc")
        crep_finish(a)
        a(f"L_P1_{tag}_nc:")
    a(f"s_cmp_lg_u32 s{sIT}, 3\ns_cbranch_scc1 L_P1_{tag}_nw\ns_waitcnt vmcnt(0)\nL_P1_{tag}_nw:")
    if G and OPT.touchw2:
        a(f"s_cmp_lg_u32 s{sIT}, {OPT.touchw2}\ns_cbranch_scc1 L_P1_{tag}_nt")
        a(f"s_lshr_b32 s{sT}, s2, 3\ns_mul_i32 s{sT}, s{sT}, 48\ns_mul_i32 s{sT2}, s{sW}, 6\ns_add_u32 s{sT}, s{sT}, s{sT2}\ns_mul_i32 s{sT}, s{sT}, 1280")
        a(f"v_min_u32 v2, 59, v0\nv_lshlrev_b32 v2, 7, v2")
        srd(a, SRD_O, pW2, SZ_W2)
        a(f"buffer_load_dword v3, v2, {S(SRD_O)}, s{sT} offen")
        if OPT.touch == 2: a(f"buffer_load_dword v3, v2, {S(SRD_O)}, s{sT} offen offset:64")
        a(f"L_P1_{tag}_nt:")
    a("s_barrier")
    a(f"s_cmp_lg_u32 s{sIT}, 3\ns_cbranch_scc1 L_P1_{tag}_nf\ns_cmp_lg_u32 s{sW}, 0\ns_cbranch_scc1 L_P1_{tag}_nf")
    a(f"v_mov_b32 v2, s{sNONCE}\ns_lshl_b32 s{sT}, s2, 2\ns_add_u32 s{sT}, s{sT}, {WS_F0}\ns_mov_b64 exec, 1")
    a(f"buffer_store_dword v2, off, {S(SRD_WS)}, s{sT} sc1\ns_mov_b64 exec, -1\nL_P1_{tag}_nf:")
    rd = p1_reads(G, NS, 0, FA)
    k = 0; rest = mf[barpos:]
    per = -(-len(rd)//(len(rest)+1))
    for r in rd[:per]: a(r)
    k = per
    for m in rest:
        a(m)
        for r in rd[k:k+per]: a(r)
        k += per
    a(f"s_add_u32 s{sIT}, s{sIT}, 1\ns_branch L_P1_{tag}")
    a(f"L_P1_{tag}_last:")
    for m in mf[barpos:]: a(m)
    ts(a,3)

XB=16; YB=40
WR=64
ACC2=88
def t_slot(a, dst, br):
    a(f"s_lshl_b32 s{dst}, s{sR}, 3\ns_add_u32 s{dst}, s{dst}, s{sCG}\ns_lshl_b32 s{dst}, s{dst}, 2\ns_add_u32 s{dst}, s{dst}, s{sTG}\ns_lshl_b32 s{dst}, s{dst}, 1\ns_add_u32 s{dst}, s{dst}, s{sCH}")
    a(f"s_mul_i32 s{dst}, s{dst}, 6144\ns_add_u32 s{dst}, s{dst}, {WS_T + br*16*8*8*6144}")
def f1_addr(a, dst, br):
    a(f"s_lshl_b32 s{dst}, s{sR}, 1\ns_add_u32 s{dst}, s{dst}, s{sKK}\ns_lshl_b32 s{dst}, s{dst}, 2\ns_add_u32 s{dst}, s{dst}, s{sTG}\ns_lshl_b32 s{dst}, s{dst}, 1\ns_add_u32 s{dst}, s{dst}, s{sCH}")
    a(f"s_lshl_b32 s{dst}, s{dst}, 7\ns_add_u32 s{dst}, s{dst}, {WS_F1 + br*256*128}")
def publish_frags(a, br, nfr):
    sA=76; sF=77
    t_slot(a, sA, br)
    a("v_lshlrev_b32 v1, 4, v0")
    l1, l2 = a.lab("L_PUBL"), a.lab("L_PUBD")
    a(f"s_cmp_eq_u32 s{sLOC}, 1\ns_cbranch_scc1 {l1}")
    for sc in (" sc1", ""):
        if not sc: a(f"{l1}:")
        for k in range(nfr):
            if k == 4: a(f"s_add_u32 s{sA}, s{sA}, 4096")
            a(f"buffer_store_dwordx4 {V(XB+4*k,4)}, v1, {S(SRD_WS)}, s{sA} offen offset:{1024*(k%4)}{sc}")
        if sc: a(f"s_branch {l2}")
    a(f"{l2}:")
def publish_flag(a, br):
    sF=77
    f1_addr(a, sF, br)
    a(f"s_lshl_b32 s76, s{sDQ}, 2\ns_add_u32 s76, s76, s{sF}")
    l1, l2 = a.lab("L_FLGL"), a.lab("L_FLGD")
    a(f"s_waitcnt vmcnt(0)\nv_mov_b32 v2, s{sNONCE}\ns_mov_b64 exec, 1\ns_cmp_eq_u32 s{sLOC}, 1\ns_cbranch_scc1 {l1}")
    a(f"buffer_store_dword v2, off, {S(SRD_WS)}, s76 sc1\ns_branch {l2}\n{l1}:\nbuffer_store_dword v2, off, {S(SRD_WS)}, s76\n{l2}:\ns_mov_b64 exec, -1")

def read_loc(a):
    a(f"v_mov_b32 v12, {L_FLG}\nds_read_b32 v2, v12")
def fin_loc(a):
    a(f"v_readfirstlane_b32 s{sLOC}, v2")
def epi_G(a):
    a("s_barrier")
    ts(a,4)
    read_loc(a)
    a(f"v_and_b32 v12, 31, v0\ns_lshl_b32 s{sT}, s{sTG}, 5\nv_add_u32 v13, s{sT}, v12\nv_lshlrev_b32 v13, 4, v13\nv_add_u32 v13, {L_TT}, v13")
    a(f"v_mov_b32 v14, {L_TZ}\nv_cmp_gt_u32 vcc, 32, v0\nv_cndmask_b32 v13, v14, v13, vcc")
    a(f"ds_read_b128 {V(FA,4)}, v13")
    a(f"s_mul_i32 s{sT}, s{sCH}, 96\nv_add_u32 v12, s{sT}, v12\nv_lshlrev_b32 v12, 4, v12\nv_add_u32 v12, {L_WT}, v12")
    for st in range(3): a(f"ds_read_b128 {V(FA+4+4*st,4)}, v12 offset:{512*st}")
    a("s_waitcnt lgkmcnt(0)")
    fin_loc(a)
    for st in range(3): a(p1_mfma(True, st, FA))
    for st in range(3):
        for i in range(16): a(f"v_max_f32 v{ACC1+16*st+i}, 0, v{ACC1+16*st+i}")
        for i in range(0, 16, 2): a(f"v_pk_mul_f32 {V(ACC1+16*st+i,2)}, {V(ACC1+16*st+i,2)}, {V(ACC1+16*st+i,2)}")
        for i in range(0, 16, 2): a(f"v_cvt_pk_bf16_f32 v{XB+8*st+i//2}, v{ACC1+16*st+i}, v{ACC1+16*st+i+1}")
    publish_frags(a, 1, 6)

RS=FB
QP="quad_perm:[1,0,3,2] row_mask:0xf bank_mask:0xf"
def epi_S(a, NS, tag):
    a("s_barrier")
    ts(a,4)
    read_loc(a)
    pi_lane(a, 12, 13)
    a(f"s_lshl_b32 s{sT}, s{sTG}, 5\nv_add_u32 v13, s{sT}, v12\nv_lshlrev_b32 v13, 4, v13\nv_add_u32 v13, {L_TT}, v13")
    a(f"v_mov_b32 v14, {L_TZ}\nv_cmp_gt_u32 vcc, 32, v0\nv_cndmask_b32 v13, v14, v13, vcc")
    a(f"ds_read_b128 {V(FA,4)}, v13")
    a(f"v_and_b32 v12, 31, v0\ns_mul_i32 s{sT}, s{sCH}, 96\nv_add_u32 v11, s{sT}, v12\nv_lshlrev_b32 v12, 4, v11\nv_add_u32 v12, {L_WT}, v12")
    for st in range(NS): a(f"ds_read_b128 {V(FA+4+4*st,4)}, v12 offset:{512*st}")
    a(f"v_lshlrev_b32 v14, 4, v11\nv_add_u32 v14, {L_KC}, v14")
    for st in range(NS): a(f"ds_read_b128 {V(KC+4*st,4)}, v14 offset:{512*st}")
    a(f"v_lshrrev_b32 v13, 5, v0\nv_lshlrev_b32 v13, 6, v13\ns_lshl_b32 s{sT}, s{sTG}, 7\ns_add_u32 s{sT}, s{sT}, {L_RS}\nv_add_u32 v13, s{sT}, v13")
    for q in range(4): a(f"ds_read_b128 {V(RS+4*q,4)}, v13 offset:{16*q}")
    a("s_waitcnt lgkmcnt(4)")
    fin_loc(a)
    for st in range(NS): a(p1_mfma(False, st, FA))
    a("s_waitcnt lgkmcnt(0)")
    A = lambda st, r: ACC1+16*st+r
    for st in range(NS):
        for r in range(0, 16, 2): a(f"v_pk_mul_f32 {V(A(st,r),2)}, {V(A(st,r),2)}, {V(RS+r,2)}")
    for r in range(16):
        for st in range(NS): a(f"v_mul_f32_dpp v{FA+st}, v{A(st,r)}, v{KC+4*st+3} {QP}")
        for st in range(NS): a(f"v_fma_f32 v{A(st,r)}, v{A(st,r)}, v{KC+4*st+2}, v{FA+st}")
    E0, E1 = FA+4, FA+8
    cur = [A(st,0) for st in range(NS)]
    for r in range(1, 16):
        nx = [(E0 if r & 1 else E1)+st for st in range(NS)]
        for st in range(NS): a(f"v_fma_f32 v{nx[st]}, v{cur[st]}, v{KC+4*st}, v{A(st,r)}")
        for st in range(NS): a(f"v_fmac_f32_dpp v{nx[st]}, v{cur[st]}, v{KC+4*st+1} {QP}")
        cur = nx
    a(f"v_lshrrev_b32 v13, 5, v0\nv_mul_u32_u24 v13, 640, v13\nv_lshl_add_u32 v13, v11, 2, v13\ns_mul_i32 s{sT}, s{sTG}, 1280\ns_add_u32 s{sT}, s{sT}, {L_ESEG}\nv_add_u32 v13, s{sT}, v13")
    for st in range(NS): a(f"ds_write_b32 v13, v{cur[st]} offset:{128*st}")
    a("s_waitcnt lgkmcnt(0)")
    ts(a,10)
    a("s_barrier")
    a(f"s_lshl_b32 s{sT}, s{sW}, 11\ns_add_u32 s{sT}, s{sT}, {L_TR}")
    a("v_and_b32 v12, 31, v0\nv_bfe_u32 v14, v0, 2, 2\nv_lshrrev_b32 v15, 5, v0\nv_lshlrev_b32 v15, 1, v15\nv_xor_b32 v14, v14, v15")
    a(f"v_lshlrev_b32 v12, 6, v12\nv_lshl_add_u32 v8, v14, 4, v12\nv_add_u32 v8, s{sT}, v8\nv_xor_b32 v9, 16, v8")
    a("v_bfe_u32 v12, v0, 2, 2\nv_lshrrev_b32 v13, 5, v0\nv_lshl_add_u32 v12, v13, 3, v12\nv_lshlrev_b32 v12, 6, v12")
    a("v_bfe_u32 v14, v0, 4, 1\nv_bfe_u32 v15, v0, 1, 1\nv_lshl_add_u32 v14, v14, 1, v15\nv_lshlrev_b32 v13, 1, v13\nv_xor_b32 v14, v14, v13")
    a(f"v_and_b32 v15, 1, v0\nv_lshl_add_u32 v12, v15, 3, v12\nv_add_u32 v12, s{sT}, v12")
    a("v_lshl_add_u32 v10, v14, 4, v12\nv_xor_b32 v14, 1, v14\nv_lshl_add_u32 v7, v14, 4, v12\nv_add_u32 v7, 256, v7")
    a(f"v_lshrrev_b32 v13, 5, v0\nv_mul_u32_u24 v13, 640, v13\nv_lshl_add_u32 v13, v11, 2, v13\ns_mul_i32 s{sT}, s{sTG}, 1280\ns_add_u32 s{sT}, s{sT}, {L_ESEG}\nv_add_u32 v13, s{sT}, v13")
    a("s_barrier")
    ts(a,11)
    for st in range(NS): a(f"ds_read_b32 v{FA+st}, v13 offset:{128*st}")
    a("s_waitcnt lgkmcnt(0)")
    for r in range(16):
        prev = [FA+st if r == 0 else A(st, r-1) for st in range(NS)]
        for st in range(NS): a(f"v_fmac_f32 v{A(st,r)}, v{prev[st]}, v{KC+4*st}")
        for st in range(NS): a(f"v_fmac_f32_dpp v{A(st,r)}, v{prev[st]}, v{KC+4*st+1} {QP}")
    for st in range(NS):
        for r in range(0, 16, 2): a(f"v_cvt_pk_bf16_f32 v{YB+r//2}, v{A(st,r)}, v{A(st,r+1)}")
        a(f"ds_write_b128 v8, {V(YB,4)}\nds_write_b128 v9, {V(YB+4,4)}")
        for kq in range(2):
            a(f"ds_read_b64_tr_b16 {V(XB+8*st+4*kq,2)}, v10 offset:{1024*kq}")
            a(f"ds_read_b64_tr_b16 {V(XB+8*st+4*kq+2,2)}, v7 offset:{1024*kq}")
    a("s_waitcnt lgkmcnt(0)")
    publish_frags(a, 0, 2*NS)
```

```python
from gp_common import *
from gp_stage1 import lam_issue, lam_finish
sLW=sTG
sSLOT=70; sXO=71; sWO=72; sT=73; sIT=74; sT2=75; sEX=77
BOUND=1<<16
def adv_slot(a, reg):
    a(f"s_add_u32 s{reg}, s{reg}, {SLOT}\ns_cmp_eq_u32 s{reg}, {3*SLOT}\ns_cselect_b32 s{reg}, 0, s{reg}")
def issue1(a, G):
    a(f"s_lshl_b32 s{sT}, s{sLW}, 10\ns_add_u32 m0, s{sSLOT}, s{sT}\ns_mov_b32 s{sT2}, s{sXO}")
    for n in range(4):
        if n: a(f"s_add_u32 m0, m0, 4096\ns_add_u32 s{sT2}, s{sT2}, 40960")
        a(f"buffer_load_dwordx4 v1, {S(SRD_X)}, s{sT2} offen lds")
    if G:
        a(f"s_mul_i32 s{sT}, s{sLW}, 6144\ns_add_u32 s{sT}, s{sT}, 16384\ns_add_u32 m0, s{sSLOT}, s{sT}\ns_mov_b32 s{sT2}, s{sWO}")
        for n in range(6):
            if n: a("s_add_u32 m0, m0, 1024")
            if n == 3: a(f"s_add_u32 s{sT2}, s{sT2}, {8*3072}")
            a("s_nop 0")
            a(f"buffer_load_dwordx4 v{2+n%3}, {S(SRD_A)}, s{sT2} offen lds")
        a(f"s_add_u32 s{sWO}, s{sWO}, {64*3072}")
    else:
        a(f"s_lshl_b32 s{sT}, s{sLW}, 10\ns_add_u32 s{sT}, s{sT}, 16384\ns_add_u32 m0, s{sSLOT}, s{sT}\ns_mov_b32 s{sT2}, s{sWO}")
        for n in range(5):
            if n: a(f"s_add_u32 m0, m0, 4096\ns_add_u32 s{sT2}, s{sT2}, 20480")
            a(f"buffer_load_dwordx4 v1, {S(SRD_A)}, s{sT2} offen lds")
        a(f"s_add_u32 s{sWO}, s{sWO}, 128")
    a(f"s_add_u32 s{sXO}, s{sXO}, 128")
    adv_slot(a, sSLOT)

def issue2(a, G, j, uid):
    i = j >> 1; hs = j & 1
    a(f"s_add_u32 s{sT}, s{sDQ}, {i}\ns_and_b32 s{sT}, s{sT}, 3")
    slot = P2SLOT[G][j % 5]
    if G:
        a(f"s_lshl_b32 s{sT2}, s{sKK}, 2\ns_add_u32 s{sT}, s{sT}, s{sT2}\ns_mul_i32 s{sT}, s{sT}, {192*1280}\ns_mul_i32 s{sT2}, s{sDQ}, 320\ns_add_u32 s{sT}, s{sT}, s{sT2}")
        if hs: a(f"s_add_u32 s{sT}, s{sT}, {48*1280}")
        a(f"s_lshl_b32 s{sT2}, s{sLW}, 10\ns_add_u32 m0, s{sT2}, {slot}")
        for n in range(8):
            if n: a("s_add_u32 m0, m0, 4096")
            if n == 7: a(f"s_cmp_ge_u32 s{sLW}, 2\ns_cbranch_scc1 L_i2skip_{uid}")
            a("s_nop 0")
            a(f"buffer_load_dwordx4 v{5+n}, {S(SRD_B)}, s{sT} offen{' nt' if OPT.wnt&1 else ''} lds")
        a(f"L_i2skip_{uid}:")
    else:
        a(f"s_lshl_b32 s{sT2}, s{sKK}, 2\ns_add_u32 s{sT2}, s{sT2}, s{sDQ}\ns_lshl_b32 s{sT2}, s{sT2}, 2\ns_add_u32 s{sT}, s{sT}, s{sT2}")
        a(f"s_lshl_b32 s{sT}, s{sT}, 1\ns_add_u32 s{sT}, s{sT}, {hs}\ns_mul_i32 s{sT}, s{sT}, 25600\ns_add_u32 s{sT}, s{sT}, {WS_CREP}")
        a(f"s_lshl_b32 s{sT2}, s{sLW}, 10\ns_add_u32 s{sT}, s{sT}, s{sT2}\ns_add_u32 m0, s{sT2}, {slot}")
        for n in range(7):
            if n: a(f"s_add_u32 m0, m0, 4096\ns_add_u32 s{sT}, s{sT}, 4096")
            if n == 6: a(f"s_cmp_ge_u32 s{sLW}, 1\ns_cbranch_scc1 L_i2skip_{uid}")
            a("s_nop 0")
            a(f"buffer_load_dwordx4 v5, {S(SRD_WS)}, s{sT} offen sc1{' nt' if OPT.wnt&2 else ''} lds")
        a(f"L_i2skip_{uid}:")

def pack_hi_lo(a, x, hi, lo, t):
    a(f"v_cvt_pk_bf16_f32 v{hi}, v{x}, v{x}\nv_lshlrev_b32 v{t}, 16, v{hi}\nv_sub_f32 v{t}, v{x}, v{t}\nv_cvt_pk_bf16_f32 v{lo}, v{t}, v{t}")

def loader(a, G, stop=None):
    p = "G" if G else "S"
    PROF.inld = True
    n1 = 10 if G else 9
    sCNT = 76
    a(f"L_LOADER_{p}:")
    ts(a,0)
    a(f"buffer_load_dword v40, off, {S(SRD_WS)}, 0 sc1")
    a(f"s_cmp_lg_u32 s{sLW}, 3\ns_cbranch_scc1 L_LD{p}_e0")
    a(f"v_lshlrev_b32 v13, 4, v0\ns_mul_i32 s{sT}, s{sDQ}, 320\ns_mov_b32 exec_lo, 0xfffff\ns_mov_b32 exec_hi, 0")
    for n, ptr in enumerate((pDSK, pB2)):
        srd(a, SRD_C, ptr, 1280)
        a(f"s_mov_b32 m0, {L_DB+320*n}\ns_nop 0\nbuffer_load_dwordx4 v13, {S(SRD_C)}, s{sT} offen lds")
    a("s_mov_b64 exec, -1")
    if not G:
        a(f"s_branch L_LD{p}_e1")
    a(f"L_LD{p}_e0:")
    if not G:
        a(f"s_lshl_b32 s{sT}, s{sLW}, 6\nv_add_u32 v42, s{sT}, v0\nv_min_u32 v42, 159, v42")
        lam_issue(a)
        a(f"L_LD{p}_e1:")
    a(f"s_and_b32 s{sT}, s{sLW}, 1\ns_lshl_b32 s{sT}, s{sT}, 2")
    a(f"v_lshrrev_b32 v2, 4, v0\nv_add_u32 v2, s{sT}, v2\nv_and_b32 v2, 7, v2\nv_and_b32 v3, 7, v0\nv_xor_b32 v2, v2, v3\nv_lshlrev_b32 v2, 4, v2")
    a("v_lshrrev_b32 v3, 3, v0\nv_mul_u32_u24 v3, 1280, v3\nv_add_u32 v1, v2, v3")
    a(f"s_lshl_b32 s{sXO}, s{sR}, 7\ns_lshl_b32 s{sT}, s{sLW}, 3\ns_add_u32 s{sXO}, s{sXO}, s{sT}\ns_mul_i32 s{sXO}, s{sXO}, 1280")
    wst = 64*3072 if G else 128
    if OPT.rot == 0: a(f"s_mov_b32 s{sCNT}, 0")
    else:
        mul = {1: 1, 2: 3}[OPT.rot]
        a(f"s_and_b32 s{sCNT}, s{sR}, 3\ns_mul_i32 s{sCNT}, s{sCNT}, {mul}\ns_add_u32 s{sCNT}, s{sCNT}, s{sCG}")
        a(f"s_cmp_ge_u32 s{sCNT}, 10\ns_cselect_b32 s{sT}, 10, 0\ns_sub_u32 s{sCNT}, s{sCNT}, s{sT}")
    a(f"s_lshl_b32 s{sT}, s{sCNT}, 7\ns_add_u32 s{sXO}, s{sXO}, s{sT}")
    if G:
        srd(a, SRD_A, pW1, SZ_W1)
        a(f"s_lshl_b32 s{sWO}, s{sLW}, 4\ns_mul_i32 s{sWO}, s{sWO}, 3072\ns_mul_i32 s{sT}, s{sCG}, 384\ns_add_u32 s{sWO}, s{sWO}, s{sT}")
        for ty in range(3):
            a(f"v_lshlrev_b32 v13, 4, v0\nv_add_u32 v13, {1024*ty}, v13\nv_mul_u32_u24 v14, 43691, v13\nv_lshrrev_b32 v14, 24, v14")
            a("v_mul_u32_u24 v15, 384, v14\nv_sub_u32 v15, v13, v15")
            a("v_lshrrev_b32 v16, 1, v14\nv_and_b32 v16, 1, v16\nv_lshlrev_b32 v16, 6, v16\nv_xor_b32 v15, v15, v16")
            a(f"v_mul_u32_u24 v14, 3072, v14\nv_add_u32 v{2+ty}, v14, v15")
    else:
        a(f"s_and_b32 s{sT}, s{sLW}, 1\ns_cmp_eq_u32 s{sT}, 1\ns_cselect_b64 s[{SRD_A}:{SRD_A+1}], s[{pBIM}:{pBIM+1}], s[{pBRE}:{pBRE+1}]")
        a(f"s_mov_b32 s{SRD_A+2}, {SZ_BC}\ns_mov_b32 s{SRD_A+3}, 0x20000")
        a(f"s_mul_i32 s{sWO}, s{sCG}, 80\ns_lshr_b32 s{sT}, s{sLW}, 1\ns_lshl_b32 s{sT}, s{sT}, 3\ns_add_u32 s{sWO}, s{sWO}, s{sT}\ns_mul_i32 s{sWO}, s{sWO}, 1280")
    a(f"s_mul_i32 s{sT}, s{sCNT}, {wst}\ns_add_u32 s{sWO}, s{sWO}, s{sT}")
    def iss():
        issue1(a, G)
        lb = a.lab("L_WRAP")
        a(f"s_add_u32 s{sCNT}, s{sCNT}, 1\ns_cmp_lg_u32 s{sCNT}, 10\ns_cbranch_scc1 {lb}")
        a(f"s_sub_u32 s{sXO}, s{sXO}, 1280\ns_sub_u32 s{sWO}, s{sWO}, {10*wst}\ns_mov_b32 s{sCNT}, 0\n{lb}:")
    a(f"s_mov_b32 s{sSLOT}, {2*SLOT}")
    if G: ts(a,7)
    iss(); iss()
    if G: ts(a,8)
    if G:
        srd(a, SRD_B, pW2, SZ_W2)
        for n in range(8):
            a(f"s_lshl_b32 s{sT}, s{sLW}, 10\ns_add_u32 s{sT}, s{sT}, {4096*n}")
            a(f"v_lshl_add_u32 v13, v0, 4, s{sT}\nv_cmp_le_u32 vcc, 15360, v13\nv_cndmask_b32 v14, 0, 1, vcc")
            a("v_mul_u32_u24 v15, 15360, v14\nv_sub_u32 v13, v13, v15\nv_mul_u32_u24 v15, 52429, v13\nv_lshrrev_b32 v15, 24, v15")
            a("v_mul_u32_u24 v16, 320, v15\nv_sub_u32 v13, v13, v16\nv_mad_u32_u24 v15, v14, 48, v15\nv_mad_u32_u24 v15, v14, 48, v15")
            a(f"v_mul_u32_u24 v15, 1280, v15\nv_add_u32 v{5+n}, v15, v13")
    else:
        a("v_lshlrev_b32 v5, 4, v0")
    a(f"v_mov_b32 v16, 0\nv_mov_b32 v17, 0\nv_mov_b32 v18, 0\nv_mov_b32 v19, 0\nv_mov_b32 v13, {L_TZ}\nds_write_b128 v13, v[16:19]")
    NC = 192 if G else 160
    a(f"s_cmp_eq_u32 s{sLW}, 3\ns_cbranch_scc1 L_LD{p}_ga3")
    a(f"s_lshl_b32 s{sT}, s{sLW}, 6\nv_add_u32 v42, s{sT}, v0\nv_min_u32 v42, {NC-1}, v42")
    if G:
        a(f"v_lshlrev_b32 v41, 3, v42\ns_mul_i32 s78, s{sCG}, 1536\ns_add_u32 s78, s78, {WS_CSG}")
        a(f"s_mul_i32 s{sT}, s{sCG}, 192\nv_add_u32 v43, s{sT}, v42\nv_lshlrev_b32 v43, 1, v43")
    else:
        a("v_and_b32 v13, 1, v42\nv_mul_u32_u24 v13, 640, v13\nv_lshrrev_b32 v14, 5, v42\nv_lshl_add_u32 v13, v14, 4, v13")
        a(f"v_and_b32 v14, 31, v42\nv_lshrrev_b32 v14, 1, v14\nv_add_u32 v13, v13, v14\ns_mul_i32 s{sT}, s{sCG}, 80\nv_add_u32 v13, s{sT}, v13\nv_lshlrev_b32 v41, 3, v13")
        a(f"s_mov_b32 s78, {WS_CSS}\nv_mov_b32 v43, 0")
    a(f"s_branch L_LD{p}_ga4")
    a(f"L_LD{p}_ga3:")
    a(f"v_lshlrev_b32 v41, 4, v0\ns_lshl_b32 s78, s{sR}, 11\ns_add_u32 s78, s78, {WS_STATS}\nv_mov_b32 v42, v0")
    a(f"s_lshr_b32 s{sT}, s2, 3\ns_and_b32 s{sT}, s{sT}, 24\ns_lshl_b32 s{sT}, s{sT}, 3\ns_and_b32 s{sT2}, s2, 7\ns_add_u32 s{sT}, s{sT}, s{sT2}")
    a(f"v_and_b32 v43, 7, v0\nv_lshl_add_u32 v43, v43, 3, s{sT}\nv_lshlrev_b32 v43, 3, v43\nv_add_u32 v43, {WS_XCC}, v43")
    a(f"L_LD{p}_ga4:")
    a(f"s_mov_b32 s{sIT}, 0")
    a(f"L_LD{p}_LOOP:")
    a(f"s_waitcnt vmcnt({n1}) lgkmcnt(0)")
    a(f"s_cmp_lg_u32 s{sIT}, 0\ns_cbranch_scc1 L_LD{p}_n0")
    a(f"v_readfirstlane_b32 s{sNONCE}, v40\ns_mul_i32 s{sNONCE}, s{sNONCE}, 1664525\ns_add_u32 s{sNONCE}, s{sNONCE}, 1013904223")
    ts(a,1)
    a(f"L_LD{p}_n0:")
    a("s_barrier")
    if PROF.on and PROF.mode==0:
        a(f"s_cmp_lg_u32 s{sIT}, 3\ns_cbranch_scc1 L_LD{p}_ts3")
        ts(a,14)
        a(f"L_LD{p}_ts3:")
    if PROF.on and PROF.mode==1:
        for k in range(7):
            a(f"s_cmp_lg_u32 s{sIT}, {k}\ns_cbranch_scc1 L_LD{p}_tsx{k}")
            ts(a,7+k,True)
            a(f"L_LD{p}_tsx{k}:")
    a(f"s_cmp_eq_u32 s{sIT}, 7\ns_cbranch_scc1 L_LD{p}_tail")
    if not OPT.noload: iss()
    if not G:
        a(f"s_cmp_lg_u32 s{sIT}, 0\ns_cbranch_scc1 L_LD{p}_nl\ns_cmp_eq_u32 s{sLW}, 3\ns_cbranch_scc1 L_LD{p}_nl")
        lam_finish(a)
        a(f"L_LD{p}_nl:")
    a(f"s_add_u32 s{sIT}, s{sIT}, 1\ns_branch L_LD{p}_LOOP")
    a(f"L_LD{p}_tail:")
    ts(a,2)
    iss()
    ngA = 17 if G else 1
    ng3 = 3
    def gathers(is3):
        if is3:
            a(f"buffer_load_dwordx4 v[44:47], v41, {S(SRD_WS)}, s78 offen sc1\nbuffer_load_dwordx4 v[48:51], v41, {S(SRD_WS)}, s78 offen offset:1024 sc1")
            a(f"buffer_load_dwordx2 v[52:53], v43, {S(SRD_WS)}, 0 offen sc1")
        elif G:
            a("s_mov_b32 s79, s78")
            for r in range(16):
                a(f"buffer_load_dwordx2 v[{44+2*r}:{45+2*r}], v41, {S(SRD_WS)}, s79 offen sc1")
                if r < 15: a("s_add_u32 s79, s79, 12288")
            a(f"global_load_ushort v76, v43, s[{pB1}:{pB1+1}]")
        else:
            a(f"buffer_load_dwordx2 v[44:45], v41, {S(SRD_WS)}, s78 offen sc1")
    def check(is3):
        n = f"s{sNONCE}"
        if is3:
            a(f"v_xor_b32 v60, {n}, v45\nv_xor_b32 v61, {n}, v47\nv_or_b32 v60, v60, v61\nv_xor_b32 v61, {n}, v49\nv_xor_b32 v62, {n}, v51\nv_or3_b32 v60, v60, v61, v62\nv_xor_b32 v61, {n}, v53\nv_or_b32 v60, v60, v61")
        elif G:
            a(f"v_xor_b32 v78, {n}, v45")
            for r in range(1, 16): a(f"v_xor_b32 v79, {n}, v{45+2*r}\nv_or_b32 v78, v78, v79")
            a("v_mov_b32 v77, v78")
        else:
            a(f"v_xor_b32 v60, {n}, v45")
        a(f"v_cmp_ne_u32 vcc, 0, v{77 if (G and not is3) else 60}")
    nwmin = 7 if G else 6
    for is3 in (True, False):
        q = "3" if is3 else "A"
        ng = ng3 if is3 else ngA
        if is3: a(f"s_cmp_lg_u32 s{sLW}, 3\ns_cbranch_scc1 L_LD{p}_tA")
        else: a(f"L_LD{p}_tA:")
        gathers(is3)
        a(f"s_waitcnt vmcnt({n1+ng})")
        ts(a,4)
        a("s_barrier")
        if G:
            issue2(a, G, 0, f"{p}0{q}"); issue2(a, G, 1, f"{p}1{q}")
            a(f"s_waitcnt vmcnt({ng+2*nwmin})")
        else:
            a(f"s_waitcnt vmcnt({ng})")
        ts(a,5)
        a("s_barrier")
        if G:
            issue2(a, G, 2, f"{p}2{q}")
            a(f"s_waitcnt vmcnt({3*nwmin})")
        else:
            a("s_waitcnt vmcnt(0)")
        a(f"s_mov_b32 s{sIT}, {BOUND}")
        a(f"L_LD{p}_chk{q}:")
        check(is3)
        a(f"s_cbranch_vccz L_LD{p}_ok{q}")
        a(f"s_sub_u32 s{sIT}, s{sIT}, 1\ns_cmp_eq_u32 s{sIT}, 0\ns_cbranch_scc1 L_LD{p}_ok{q}")
        a("s_sleep 8")
        gathers(is3)
        a(f"s_waitcnt vmcnt(0)\ns_branch L_LD{p}_chk{q}")
        a(f"L_LD{p}_ok{q}:")
        ts(a,3)
        if is3:
            for t in range(2):
                m, rs = 44+4*t, 46+4*t
                a(f"v_sub_f32 v60, 0, v{m}")
                pack_hi_lo(a, 60, 61, 62, 63)
                a(f"v_rcp_f32 v64, v{rs}")
                pack_hi_lo(a, 64, 65, 66, 63)
                a("s_mov_b32 s76, 0x05040100")
                a("v_perm_b32 v68, v62, v61, s76\nv_perm_b32 v69, v65, v61, s76\nv_and_b32 v70, 0xffff, v66\nv_mov_b32 v71, 0")
                a(f"v_lshlrev_b32 v13, 4, v0\nv_add_u32 v13, {L_TT+1024*t}, v13\nds_write_b128 v13, v[68:71]")
                a(f"v_mov_b32 v72, v{m}\nv_mov_b32 v73, v{rs}\nv_lshlrev_b32 v13, 3, v0\nv_add_u32 v13, {L_ST+512*t}, v13\nds_write_b64 v13, v[72:73]")
                a(f"v_lshlrev_b32 v13, 2, v0\nv_add_u32 v13, {L_RS+256*t}, v13\nds_write_b32 v13, v73")
            a(f"s_getreg_b32 s{sT}, hwreg(HW_REG_XCC_ID, 0, 4)\nv_cmp_ne_u32 vcc, s{sT}, v52\ns_cmp_eq_u64 vcc, 0\ns_cselect_b32 s{sT}, {1 if OPT.local else 0}, 0")
            a(f"v_mov_b32 v14, s{sT}\nv_mov_b32 v13, {L_FLG}\nds_write_b32 v13, v14")
            a(f"s_branch L_LD{p}_tdone")
        else:
            if G:
                for r in range(1, 16): a(f"v_add_f32 v44, v44, v{44+2*r}")
            pack_hi_lo(a, 44, 45, 46, 47)
            a("s_mov_b32 s76, 0x05040100")
            a("v_perm_b32 v48, v45, v45, s76")
            if G:
                a("v_perm_b32 v49, v76, v46, s76\nv_and_b32 v50, 0xffff, v76")
            else:
                a("v_and_b32 v49, 0xffff, v46\nv_mov_b32 v50, 0")
            a(f"v_mov_b32 v51, 0\nv_lshlrev_b32 v13, 4, v42\nv_add_u32 v13, {L_WT}, v13\nds_write_b128 v13, v[48:51]")
    a(f"L_LD{p}_tdone:")
    a("s_waitcnt lgkmcnt(0)")
    ts(a,6)
    a("s_barrier")
    if stop == "p1": bump(a, p); a("s_waitcnt vmcnt(0)\ns_endpgm"); return
    if not G:
        e_exchange(a)
        for j in range(4): issue2(a, G, j, f"{p}{j}")
    else:
        for j in (3, 4): issue2(a, G, j, f"{p}{j}")
    if stop == "epi": bump(a, p); a("s_waitcnt vmcnt(0)\ns_endpgm"); return
    nw = nwmin
    issued = 5 if G else 4
    for j in range(8):
        newer = issued - 1 - j
        a(f"s_waitcnt vmcnt({newer*nw})")
        if j in (0,1,4,7): ts(a,{0:9,1:10,4:11,7:12}[j])
        a("s_barrier")
        if issued <= 7 and issued <= j+4:
            issue2(a, G, issued, f"{p}{issued}"); issued += 1
    bump(a, p)
    ts(a,13)
    endpgm(a)

def bump(a, p):
    a(f"s_cmp_lg_u32 s2, 0\ns_cbranch_scc1 L_LD{p}_nb\ns_cmp_lg_u32 s{sLW}, 0\ns_cbranch_scc1 L_LD{p}_nb")
    a(f"v_mov_b32 v13, s{sNONCE}\ns_mov_b64 exec, 1\nbuffer_store_dword v13, off, {S(SRD_WS)}, 0 sc1\ns_mov_b64 exec, -1")
    a(f"L_LD{p}_nb:")

def e_exchange(a):
    sPASS=76
    a(f"s_cmp_lg_u32 s{sLW}, 3\ns_cbranch_scc1 L_EX_work")
    a("s_barrier")
    a(f"s_mov_b32 s{sIT}, {BOUND}\ns_mov_b32 s79, {WS_F0}\nv_lshlrev_b32 v41, 4, v0")
    a("L_EX_f0:")
    a(f"buffer_load_dwordx4 v[56:59], v41, {S(SRD_WS)}, s79 offen sc1\ns_waitcnt vmcnt(0)")
    a(f"v_xor_b32 v60, s{sNONCE}, v56")
    for r in range(1, 4): a(f"v_xor_b32 v61, s{sNONCE}, v{56+r}\nv_or_b32 v60, v60, v61")
    a(f"v_cmp_ne_u32 vcc, 0, v60\ns_cbranch_vccz L_EX_f0ok\ns_sleep 8\ns_sub_u32 s{sIT}, s{sIT}, 1\ns_cmp_lg_u32 s{sIT}, 0\ns_cbranch_scc1 L_EX_f0")
    a("L_EX_f0ok:")
    if OPT.touchc:
        a(f"s_lshr_b32 s{sT}, s2, 3\ns_mul_i32 s{sT}, s{sT}, 51200\ns_add_u32 s{sT}, s{sT}, {WS_CREP}\nv_lshlrev_b32 v13, 7, v0")
        for k in range(6):
            a(f"buffer_load_dword v20, v13, {S(SRD_WS)}, s{sT} offen sc1\ns_add_u32 s{sT}, s{sT}, 8192")
        a(f"v_min_u32 v14, 15, v0\nv_lshlrev_b32 v14, 7, v14\nbuffer_load_dword v20, v14, {S(SRD_WS)}, s{sT} offen sc1")
    a("s_branch L_EX_done\nL_EX_work:")
    a(f"s_lshl_b32 s{sT}, s{sLW}, 6\nv_add_u32 v42, s{sT}, v0")
    a(f"s_cmp_lg_u32 s{sLW}, 2\ns_cbranch_scc1 L_EX_full\ns_mov_b32 exec_hi, 0\nL_EX_full:")
    a(f"v_lshlrev_b32 v13, 2, v42\nv_add_u32 v13, {L_ESEG}, v13")
    a(f"v_lshlrev_b32 v14, 3, v42\nv_mov_b32 v52, v80\nv_mov_b32 v53, v81")
    a("v_and_b32 v16, 1, v0\nv_lshlrev_b32 v16, 31, v16\nv_or_b32 v16, 0x3f800000, v16")
    a("v_mul_f32 v54, v53, v16")
    a("v_mov_b32 v58, v52\nv_mov_b32 v59, v53")
    for _ in range(3):
        a("v_mul_f32 v60, v59, v59\nv_mul_f32 v61, v58, v59\nv_fma_f32 v58, v58, v58, -v60\nv_add_f32 v59, v61, v61")
    a("v_mul_f32 v59, v59, v16")
    a(f"s_lshl_b32 s78, s{sR}, 3\ns_add_u32 s78, s78, s{sCG}\ns_mul_i32 s78, s78, 1280\ns_add_u32 s78, s78, {WS_EG}")
    a(f"s_mov_b32 s{sPASS}, {0 if OPT.exwarm else 1}\ns_mov_b64 s[82:83], exec")
    a("L_EX_top:")
    for j in range(1, 16): a(f"v_mov_b32 v{62+2*j}, 0\nv_mov_b32 v{63+2*j}, s{sNONCE}")
    a(f"s_cmp_lg_u32 s{sPASS}, 0\ns_cbranch_scc1 L_EX_b1\ns_mov_b64 exec, 0\ns_branch L_EX_nb1\nL_EX_b1:")
    a("s_barrier")
    ts(a,7)
    a("L_EX_nb1:")
    for s in range(8): a(f"ds_read_b32 v{44+s}, v13 offset:{640*s}")
    a("s_waitcnt lgkmcnt(0)")
    a("v_mov_b32 v56, v44")
    for s in range(1, 8):
        a(f"v_mov_b32 v57, v{44+s}\nv_fmac_f32 v57, v56, v52\nv_fmac_f32_dpp v57, v56, v54 quad_perm:[1,0,3,2] row_mask:0xf bank_mask:0xf\nv_mov_b32 v56, v57")
    a(f"v_mov_b32 v57, s{sNONCE}")
    a(f"s_cmp_eq_u32 s{sPASS}, 0\ns_cbranch_scc1 L_EX_ns")
    a(f"buffer_store_dwordx2 v[56:57], v14, {S(SRD_WS)}, s78 offen sc1")
    a("L_EX_ns:")
    a(f"s_mov_b32 s{sIT}, {BOUND}")
    a("L_EX_retry:")
    a(f"s_mov_b32 s{sT2}, s78")
    for j in range(1, 16):
        a(f"s_cmp_lt_u32 s{sR}, {j}\ns_cbranch_scc1 L_EX_iss")
        a(f"s_sub_u32 s{sT2}, s{sT2}, {8*1280}")
        a(f"buffer_load_dwordx2 v[{62+2*j}:{63+2*j}], v14, {S(SRD_WS)}, s{sT2} offen sc1")
    a("L_EX_iss:")
    a("s_waitcnt vmcnt(0)")
    a(f"v_xor_b32 v60, s{sNONCE}, v65")
    for j in range(2, 16):
        a(f"v_xor_b32 v61, s{sNONCE}, v{63+2*j}\nv_or_b32 v60, v60, v61")
    a("v_cmp_ne_u32 vcc, 0, v60")
    a(f"s_cbranch_vccz L_EX_go\ns_cmp_eq_u32 s{sPASS}, 0\ns_cbranch_scc1 L_EX_go")
    if OPT.exsleep: a(f"s_sleep {OPT.exsleep}")
    a(f"s_sub_u32 s{sIT}, s{sIT}, 1\ns_cmp_lg_u32 s{sIT}, 0\ns_cbranch_scc1 L_EX_retry")
    a("L_EX_go:")
    if PROF.on:
        a(f"s_cmp_eq_u32 s{sPASS}, 0\ns_cbranch_scc1 L_EX_nts")
        ts(a,8)
        a("L_EX_nts:")
    a(f"v_mov_b32 v56, v{62+30}")
    for j in range(14, 0, -1):
        g = 62+2*j
        a(f"v_fmac_f32 v{g}, v56, v58\nv_fmac_f32_dpp v{g}, v56, v59 quad_perm:[1,0,3,2] row_mask:0xf bank_mask:0xf\nv_mov_b32 v56, v{g}")
    for s in range(8):
        a(f"ds_write_b32 v13, v56 offset:{640*s}")
        if s < 7:
            a(f"v_fmac_f32 v{44+s}, v56, v52\nv_fmac_f32_dpp v{44+s}, v56, v54 quad_perm:[1,0,3,2] row_mask:0xf bank_mask:0xf\nv_mov_b32 v56, v{44+s}")
    a("s_mov_b64 exec, s[82:83]")
    a(f"s_cmp_eq_u32 s{sPASS}, 0\ns_mov_b32 s{sPASS}, 1\ns_cbranch_scc1 L_EX_top")
    a("s_mov_b64 exec, -1\ns_waitcnt lgkmcnt(0)")
    a("L_EX_done:")
    a("s_barrier")
```

```python
from gp_common import *
from gp_compute import MF, XB, YB, WR, ACC2, t_slot, f1_addr, publish_flag, sT, sT2
BOUND=1<<16
sTA=78; sP=79; sIT2=80
RING=6; LA=5
def tok_loads(a, br, i, buf, nfr):
    a(f"s_add_u32 s{sT}, s{sDQ}, {i}\ns_and_b32 s{sT}, s{sT}, 3\ns_lshl_b32 s{sT2}, s{sKK}, 2\ns_add_u32 s{sT}, s{sT}, s{sT2}")
    a(f"s_lshl_b32 s{sTA}, s{sR}, 3\ns_add_u32 s{sTA}, s{sTA}, s{sT}\ns_lshl_b32 s{sTA}, s{sTA}, 2\ns_add_u32 s{sTA}, s{sTA}, s{sTG}\ns_lshl_b32 s{sTA}, s{sTA}, 1\ns_add_u32 s{sTA}, s{sTA}, s{sCH}")
    a(f"s_mul_i32 s{sTA}, s{sTA}, 6144\ns_add_u32 s{sTA}, s{sTA}, {WS_T + br*16*8*8*6144}")
    for k in range(nfr):
        if k == 4: a(f"s_add_u32 s{sTA}, s{sTA}, 4096")
        a(f"buffer_load_dwordx4 {V(buf+4*k,4)}, v1, {S(SRD_WS)}, s{sTA} offen offset:{1024*(k%4)} sc1")
sSL=[None,84,85,86]
def tok_addr(a, br, i):
    d = sSL[i]
    a(f"s_add_u32 s{sT}, s{sDQ}, {i}\ns_and_b32 s{sT}, s{sT}, 3\ns_lshl_b32 s{sT2}, s{sKK}, 2\ns_add_u32 s{sT}, s{sT}, s{sT2}")
    a(f"s_lshl_b32 s{d}, s{sR}, 3\ns_add_u32 s{d}, s{d}, s{sT}\ns_lshl_b32 s{d}, s{d}, 2\ns_add_u32 s{d}, s{d}, s{sTG}\ns_lshl_b32 s{d}, s{d}, 1\ns_add_u32 s{d}, s{d}, s{sCH}")
    a(f"s_mul_i32 s{d}, s{d}, 6144\ns_add_u32 s{d}, s{d}, {WS_T + br*16*8*8*6144}\ns_add_u32 s{d+3}, s{d}, 4096")
def tok_load1(a, i, k, buf):
    d = sSL[i] + (3 if k >= 4 else 0)
    a(f"buffer_load_dwordx4 {V(buf+4*k,4)}, v1, {S(SRD_WS)}, s{d} offen offset:{1024*(k%4)}{['',' sc1',' nt',' sc1 nt'][OPT.tsc]}")
def poll_f1(a, br, tag):
    f1_addr(a, sP, br)
    a(f"s_mov_b32 s{sIT2}, {BOUND}")
    a(f"L_PF1_{tag}:")
    a(f"buffer_load_dwordx4 v[12:15], off, {S(SRD_WS)}, s{sP} sc1\ns_waitcnt vmcnt(0)")
    a(f"v_xor_b32 v12, s{sNONCE}, v12\nv_xor_b32 v13, s{sNONCE}, v13\nv_xor_b32 v14, s{sNONCE}, v14\nv_xor_b32 v15, s{sNONCE}, v15")
    a("v_or3_b32 v12, v12, v13, v14\nv_or_b32 v12, v12, v15\nv_cmp_ne_u32 vcc, 0, v12")
    a(f"s_cbranch_vccz L_PF1_{tag}_ok\ns_sub_u32 s{sIT2}, s{sIT2}, 1\ns_cmp_lg_u32 s{sIT2}, 0\ns_cbranch_scc1 L_PF1_{tag}")
    a(f"L_PF1_{tag}_ok:")

PF=XB
sXO=90
def final_addr(a, br):
    qf_expr(a, br, 81)
    a(f"s_lshl_b32 s82, s{sR}, 7\ns_lshl_b32 s83, s81, 5\ns_add_u32 s82, s82, s83")
    a("v_and_b32 v2, 31, v0\nv_add_u32 v2, s82, v2")
    a("v_lshrrev_b32 v3, 5, v0\nv_lshlrev_b32 v3, 3, v3")
    a("v_mul_u32_u24 v6, 1280, v2\nv_add_u32 v6, v6, v3")
    for sl in range(2):
        d = sXO+sl
        a(f"s_add_u32 s82, s{sW}, {8*sl}\ns_min_u32 s82, s82, 9\ns_lshr_b32 s83, s82, 1\ns_lshl_b32 s83, s83, 6\ns_and_b32 s82, s82, 1\ns_lshl_b32 s82, s82, 5\ns_add_u32 s{d}, s82, s83")
    a(f"s_mul_i32 s92, s{sDQ}, 320")
def final_xloads(a, tag):
    for sl in range(2):
        if sl: a(f"s_cmp_ge_u32 s{sW}, 2\ns_cbranch_scc1 L_FXL_{tag}")
        a(f"s_add_u32 s82, s92, s{sXO+sl}")
        for sub in range(2):
            a(f"buffer_load_dwordx2 {V(PF+4*sl+2*sub,2)}, v6, {S(SRD_X)}, s82 offen offset:{16*sub}")
    a(f"L_FXL_{tag}:")
def qf_expr(a, br, dst):
    a(f"s_add_u32 s{dst}, s{sKK}, {2*br}")

def phase2(a, G, ch, tag, flagslab=0):
    br = 1 if G else 0
    nk = 3 if (G or ch == 0) else 2
    nfr = 2*nk
    PS = 5*nk; N = 8*PS
    tb = PS - 3
    if G:
        a("v_bfe_u32 v12, v0, 2, 2\nv_lshrrev_b32 v13, 5, v0\nv_lshl_add_u32 v13, v13, 2, v12\nv_mul_u32_u24 v13, 320, v13")
        a("v_bfe_u32 v14, v0, 4, 1\nv_lshl_add_u32 v13, v14, 5, v13\nv_and_b32 v14, 3, v0\nv_lshl_add_u32 v13, v14, 3, v13")
        a(f"s_mul_i32 s{sT}, s{sCH}, 15360\nv_add_u32 v4, s{sT}, v13")
    else:
        a(f"v_lshlrev_b32 v4, 4, v0")
        if ch: a("v_add_u32 v4, 15360, v4")
    a("v_lshlrev_b32 v1, 4, v0")
    q = []
    def adr(j): return 5 + (j & 1)
    def adr(j): return 8 + (j & 1)
    def set_adr(j): a(f"v_add_u32 v{adr(j)}, {P2SLOT[G][j%5]}, v4")
    def frag_read(n):
        j, t = divmod(n, PS); kk, dt = divmod(t, 5)
        r = WR + 4*(n % RING)
        if G:
            o = kk*5120 + dt*64
            a(f"ds_read_b64_tr_b16 {V(r,2)}, v{adr(j)} offset:{o}"); q.append(n)
            a(f"ds_read_b64_tr_b16 {V(r+2,2)}, v{adr(j)} offset:{o+2560}"); q.append(n)
        else:
            a(f"ds_read_b128 {V(r,4)}, v{adr(j)} offset:{1024*t}"); q.append(n)
    def wait_frag(n):
        if n not in q: return
        last = len(q) - 1 - q[::-1].index(n)
        cnt = len(q) - 1 - last
        a(f"s_waitcnt lgkmcnt({cnt})")
        del q[:last+1]
    vm = []
    def wait_vm(lbl):
        if lbl not in vm: return
        last = len(vm) - 1 - vm[::-1].index(lbl)
        a(f"s_waitcnt vmcnt({len(vm)-1-last})")
        del vm[:last+1]
    buf = [XB, YB, XB, YB]
    set_adr(0); set_adr(1)
    ts(a,5)
    a("s_barrier")
    ts(a,6)
    rp = 0; allowed = PS
    issued = set(); polled = False; pend = []; queued = set(); cnt = 0
    def pop():
        if pend:
            ii, k = pend.pop(0)
            tok_load1(a, ii, k, buf[ii]); vm.append((ii, k)); issued.add((ii, k))
    while rp < LA: frag_read(rp); rp += 1
    for n in range(N):
        j, t = divmod(n, PS); kk, dt = divmod(t, 5)
        i = j >> 1; hs = j & 1
        if t == tb:
            assert rp == (j+1)*PS, (rp, j)
            a("s_waitcnt lgkmcnt(0)"); q.clear()
            a("s_barrier")
            allowed = min(N, (j+2)*PS)
            if j+2 <= 7: set_adr(j+2)
            while rp < min(allowed, n + LA): frag_read(rp); rp += 1
        if OPT.p2ts and t == 0 and j == 2: ts(a,1,True)
        if dt == 0:
            k = nk*hs + kk
            if i > 0:
                while OPT.p2poll and (i, k) not in issued: pop()
                wait_vm((i, k))
        if OPT.p2ts and t == 0 and j >= 2: ts(a,{2:2,3:3,4:4,5:10,6:11,7:5}[j],True)
        wait_frag(n)
        acc = V(ACC2+16*dt, 16)
        tf = V(buf[i] + 4*(nk*hs + kk), 4)
        c = "0" if (j == 0 and kk == 0) else acc
        a(f"{MF} {acc}, {V(WR+4*(n%RING),4)}, {tf}, {c}")
        while rp < min(allowed, n + 1 + LA): frag_read(rp); rp += 1
        if OPT.p2poll:
            if j == 0 and t == 4: publish_flag(a, br)
            if j == 0 and t == PS-1:
                ts(a,12)
                f1_addr(a, sP, br)
                a(f"buffer_load_dwordx4 v[12:15], off, {S(SRD_WS)}, s{sP} sc1")
                for ii in (1, 2, 3): tok_addr(a, br, ii)
            if j == 1 and t == min(OPT.p2poll, PS-1):
                a("s_waitcnt vmcnt(0)")
                a(f"s_mov_b32 s{sIT2}, {BOUND}")
                a(f"L_PF1_{tag}:")
                a(f"v_xor_b32 v12, s{sNONCE}, v12\nv_xor_b32 v13, s{sNONCE}, v13\nv_xor_b32 v14, s{sNONCE}, v14\nv_xor_b32 v15, s{sNONCE}, v15")
                a("v_or3_b32 v12, v12, v13, v14\nv_or_b32 v12, v12, v15\nv_cmp_ne_u32 vcc, 0, v12")
                a(f"s_cbranch_vccz L_PF1_{tag}_ok\ns_sub_u32 s{sIT2}, s{sIT2}, 1\ns_cmp_eq_u32 s{sIT2}, 0\ns_cbranch_scc1 L_PF1_{tag}_ok")
                a(f"buffer_load_dwordx4 v[12:15], off, {S(SRD_WS)}, s{sP} sc1\ns_waitcnt vmcnt(0)\ns_branch L_PF1_{tag}")
                a(f"L_PF1_{tag}_ok:")
                ts(a,7)
                pend += [(1, k) for k in range(nfr)]
                done = nk + (t + 1)//5
                pend += [(2, k) for k in range(done)]
                for x in pend: queued.add(x)
                for _ in range(OPT.tq0): pop()
                polled = True; cnt = 0
            elif polled:
                if dt == 4 and i + 2 <= 3:
                    k = nk*hs + kk
                    if (i+2, k) not in queued: pend.append((i+2, k)); queued.add((i+2, k))
                cnt += 1
                if cnt % OPT.tqr == 0: pop()
            if j == 1 and t == 0: final_addr(a, br)
            if t == PS-1 and j == 5: final_xloads(a, tag)
        elif t == PS-1:
            if j == flagslab: publish_flag(a, br)
            if j == 1:
                ts(a,12)
                poll_f1(a, br, tag)
                ts(a,7)
                tok_loads(a, br, 1, YB, nfr); vm += [(1, k) for k in range(nfr)]
                tok_loads(a, br, 2, XB, nfr); vm += [(2, k) for k in range(nfr)]
        if t == PS-1 and not OPT.p2poll:
            if j == 3:
                tok_loads(a, br, 3, YB, nfr); vm += [(3, k) for k in range(nfr)]
            if j == 5:
                nops = final_prefetch(a, br); vm += [("pf", k) for k in range(nops)]

def _x(): pass
XO_OWN=81920
def final(a, G, tag):
    br = 1 if G else 0
    ts(a,8)
    a(f"s_mul_i32 s{sT}, s{sW}, 10240\nv_add_u32 v4, s{sT}, v1")
    a(f"s_xor_b32 s{sT}, s{sW}, 4\ns_mul_i32 s{sT}, s{sT}, 10240\nv_add_u32 v5, s{sT}, v1")
    a(f"s_cmp_eq_u32 s{sCH}, 0\ns_cbranch_scc1 L_FX0_{tag}")
    for g in range(10): a(f"ds_write_b128 v4, {V(ACC2+4*g,4)} offset:{1024*g}")
    a("s_waitcnt lgkmcnt(0)\ns_barrier")
    for g in range(10): a(f"ds_read_b128 {V(ACC2+4*g,4)}, v5 offset:{1024*g}")
    a("s_waitcnt lgkmcnt(0)")
    for r in range(0, 40, 2): a(f"v_pk_add_f32 {V(ACC2+r,2)}, {V(ACC2+r,2)}, {V(ACC2+40+r,2)}")
    a(f"s_branch L_FX1_{tag}")
    a(f"L_FX0_{tag}:")
    for g in range(10): a(f"ds_write_b128 v4, {V(ACC2+40+4*g,4)} offset:{1024*g}")
    a("s_waitcnt lgkmcnt(0)\ns_barrier")
    for g in range(10): a(f"ds_read_b128 {V(ACC2+40+4*g,4)}, v5 offset:{1024*g}")
    a("s_waitcnt lgkmcnt(0)")
    for r in range(0, 40, 2): a(f"v_pk_add_f32 {V(ACC2+r,2)}, {V(ACC2+r,2)}, {V(ACC2+40+r,2)}")
    a(f"L_FX1_{tag}:")
    a(f"s_cmp_eq_u32 s{sTG}, s81\ns_cbranch_scc1 L_OWN_{tag}")
    a(f"s_lshl_b32 s84, s{sR}, 2\ns_add_u32 s84, s84, s{sDQ}\ns_lshl_b32 s84, s84, 2\ns_add_u32 s84, s84, s{sTG}")
    a(f"s_lshl_b32 s82, s84, 8\ns_add_u32 s82, s82, {WS_F2}")
    a(f"s_lshl_b32 s84, s84, 2\ns_add_u32 s84, s84, s81")
    a(f"s_mul_i32 s84, s84, 10\ns_mul_i32 s85, s{sCH}, 5\ns_add_u32 s84, s84, s85\ns_lshl_b32 s84, s84, 10\ns_add_u32 s84, s84, {WS_X}")
    T0 = ACC2+40
    for k in range(20): a(f"v_cvt_pk_bf16_f32 v{T0+k}, v{ACC2+2*k}, v{ACC2+2*k+1}")
    a(f"s_lshr_b32 s83, s{sTG}, 1\ns_cmp_eq_u32 s83, {br}\ns_cselect_b32 s83, s{sLOC}, 0")
    if not OPT.locx: a("s_mov_b32 s83, 0")
    a(f"s_lshr_b32 s85, s{sTG}, 1\ns_cmp_eq_u32 s85, {br}\ns_cbranch_scc1 L_FA_{tag}\ns_lshl_b32 s85, s{sKK}, 3\ns_add_u32 s82, s82, s85\ns_add_u32 s82, s82, 128\nL_FA_{tag}:")
    a(f"s_lshl_b32 s85, s{sCH}, 2\ns_add_u32 s82, s82, s85")
    a(f"s_cmp_eq_u32 s83, 1\ns_cbranch_scc1 L_SNDL_{tag}")
    for sc in (" sc1", ""):
        if not sc: a(f"L_SNDL_{tag}:")
        for m in range(5):
            o = 1024*(m % 4)
            if m == 4: a("s_add_u32 s84, s84, 4096")
            a(f"buffer_store_dwordx4 {V(T0+4*m,4)}, v1, {S(SRD_WS)}, s84 offen offset:{o}{sc}")
        if sc: a(f"s_branch L_SENT_{tag}")
    a(f"s_branch L_SENT_{tag}")
    a(f"L_OWN_{tag}:")
    a(f"s_mul_i32 s84, s{sCH}, 10240\ns_add_u32 s84, s84, {XO_OWN}\nv_add_u32 v4, s84, v1")
    for k in range(10): a(f"ds_write_b128 v4, {V(ACC2+4*k,4)} offset:{1024*k}")
    a(f"L_SENT_{tag}:")
    a("s_waitcnt lgkmcnt(0)\ns_barrier")
    a(f"s_cmp_eq_u32 s{sTG}, s81\ns_cbranch_scc1 L_NOFLAG_{tag}")
    a(f"s_waitcnt vmcnt(0)\nv_mov_b32 v12, s{sNONCE}\ns_mov_b64 exec, 1\ns_cmp_eq_u32 s83, 1\ns_cbranch_scc1 L_FLL_{tag}")
    a(f"buffer_store_dword v12, off, {S(SRD_WS)}, s82 sc1\ns_branch L_FLD_{tag}\nL_FLL_{tag}:\nbuffer_store_dword v12, off, {S(SRD_WS)}, s82\nL_FLD_{tag}:\ns_mov_b64 exec, -1")
    a(f"L_NOFLAG_{tag}:")
    a(f"s_lshl_b32 s84, s{sR}, 2\ns_add_u32 s84, s84, s{sDQ}\ns_lshl_b32 s84, s84, 2\ns_add_u32 s84, s84, s81")
    a(f"s_lshl_b32 s82, s84, 8\ns_add_u32 s82, s82, {WS_F2}")
    a(f"s_mul_i32 s84, s84, {4*10240}\ns_add_u32 s84, s84, {WS_X}")
    a(f"s_lshl_b32 s83, s{sW}, 10\ns_add_u32 s84, s84, s83")
    a("s_xor_b32 s85, s81, 1")
    a(f"s_mul_i32 s85, s85, 10240\ns_add_u32 s85, s85, s84")
    ob = 0 if G else 2
    a(f"s_add_u32 s86, s84, {ob*10240}")
    IN = ACC2
    OW = ACC2+40
    DB = ACC2+24
    a(f"s_lshl_b32 s83, s{sW}, 11\ns_add_u32 s83, s83, {XO_OWN}\nv_add_u32 v5, s83, v1")
    a(f"v_add_u32 v4, {L_DB}, v3")
    for sl in range(2):
        if sl: a(f"s_cmp_ge_u32 s{sW}, 2\ns_cbranch_scc1 L_FR_{tag}\nv_add_u32 v5, 16384, v5")
        a(f"v_add_u32 v7, s{sXO+sl}, v4")
        for sub in range(2):
            g = 2*sl+sub
            a(f"ds_read_b128 {V(OW+4*g,4)}, v5 offset:{1024*sub}")
            a(f"ds_read_b64 {V(DB+4*g,2)}, v7 offset:{16*sub}\nds_read_b64 {V(DB+4*g+2,2)}, v7 offset:{320+16*sub}")
    a(f"L_FR_{tag}:")
    a(f"v_and_b32 v4, 31, v0\ns_lshl_b32 s83, s81, 5\nv_add_u32 v4, s83, v4\nv_lshlrev_b32 v4, 3, v4\nv_add_u32 v4, {L_ST}, v4\nds_read_b64 v[10:11], v4")
    srd(a, SRD_O, pOUT, SZ_OUT)
    a("s_mov_b32 s94, 0x00003f80\ns_mov_b32 s95, 0x3f800000")
    a("v_mul_u32_u24 v6, 2560, v2\nv_lshrrev_b32 v3, 5, v0\nv_lshl_add_u32 v6, v3, 4, v6")
    ts(a,13)
    a("v_min_u32 v12, 5, v0\nv_lshlrev_b32 v13, 2, v12\nv_add_u32 v14, 120, v13\nv_cmp_gt_u32 vcc, 2, v12\nv_cndmask_b32 v13, v14, v13, vcc")
    a(f"s_mov_b32 s{sIT2}, {BOUND}")
    a(f"L_CP_{tag}:")
    a(f"buffer_load_dword v14, v13, {S(SRD_WS)}, s82 offen sc1\ns_waitcnt vmcnt(0)\nv_cmp_ne_u32 vcc, s{sNONCE}, v14")
    a(f"s_cbranch_vccz L_FP_{tag}\ns_sleep {OPT.cpoll}\ns_sub_u32 s{sIT2}, s{sIT2}, 1\ns_cmp_lg_u32 s{sIT2}, 0\ns_cbranch_scc1 L_CP_{tag}")
    a(f"L_FP_{tag}:")
    def inbox(sl):
        if sl: a("s_add_u32 s85, s85, 8192\ns_add_u32 s86, s86, 8192")
        a(f"buffer_load_dwordx4 {V(IN+12*sl,4)}, v1, {S(SRD_WS)}, s85 offen{['',' sc1',' nt',' sc1 nt'][OPT.isc]}")
        a(f"buffer_load_dwordx4 {V(IN+12*sl+4,4)}, v1, {S(SRD_WS)}, s86 offen{['',' sc1',' nt',' sc1 nt'][OPT.isc]}")
        a(f"s_add_u32 s83, s86, 10240\nbuffer_load_dwordx4 {V(IN+12*sl+8,4)}, v1, {S(SRD_WS)}, s83 offen{['',' sc1',' nt',' sc1 nt'][OPT.isc]}")
    inbox(0)
    a(f"s_cmp_ge_u32 s{sW}, 2\ns_cbranch_scc1 L_FI_{tag}")
    inbox(1)
    a(f"L_FI_{tag}:")
    ts(a,9)
    a("s_waitcnt lgkmcnt(0)")
    a("v_mul_f32 v12, v10, v11\nv_sub_f32 v12, 0, v12\nv_mul_f32 v13, v11, v11")
    W = 40
    def group(sl, sub):
        g = 2*sl+sub
        A_, B_, C_ = IN+12*sl+2*sub, IN+12*sl+4+2*sub, IN+12*sl+8+2*sub
        U = OW+4*g ; Vv = W
        sel = ["s94", "s95"]
        for e in range(4):
            a(f"v_dot2_f32_bf16 v{U+e}, v{A_+(e>>1)}, {sel[e&1]}, v{U+e}")
        for e in range(4):
            a(f"v_dot2_f32_bf16 v{Vv+e}, v{B_+(e>>1)}, {sel[e&1]}, 0")
        for e in range(4):
            a(f"v_dot2_f32_bf16 v{Vv+e}, v{C_+(e>>1)}, {sel[e&1]}, v{Vv+e}")
        sreg, oreg = (Vv, U) if G else (U, Vv)
        X_, D_, B2 = W+4, W+8, W+12
        for (dst, src) in ((X_, PF+2*g), (D_, DB+4*g), (B2, DB+4*g+2)):
            a(f"v_lshlrev_b32 v{dst}, 16, v{src}\nv_and_b32 v{dst+1}, 0xffff0000, v{src}\nv_lshlrev_b32 v{dst+2}, 16, v{src+1}\nv_and_b32 v{dst+3}, 0xffff0000, v{src+1}")
        XN = W+16
        for e in range(4): a(f"v_fma_f32 v{XN+e}, v{X_+e}, v11, v12")
        for e in range(4): a(f"v_fmac_f32 v{sreg+e}, v{XN+e}, v{D_+e}")
        for e in range(4): a(f"v_fma_f32 v{oreg+e}, v{oreg+e}, v13, v{B2+e}")
        for e in range(4): a(f"v_mul_f32 v{XN+e}, 0xbfb8aa3b, v{oreg+e}")
        for e in range(4): a(f"v_exp_f32 v{XN+e}, v{XN+e}")
        for e in range(4): a(f"v_add_f32 v{XN+e}, 1.0, v{XN+e}")
        for e in range(4): a(f"v_rcp_f32 v{XN+e}, v{XN+e}")
        for e in range(4): a(f"v_mul_f32 v{oreg+e}, v{oreg+e}, v{XN+e}")
        O4 = W+20 + 4*(g & 1)
        for e in range(4): a(f"v_fma_f32 v{O4+e}, v{sreg+e}, v{oreg+e}, v{X_+e}")
        if sub == 0: a(f"s_add_u32 s83, s92, s{sXO+sl}\ns_lshl_b32 s83, s83, 1")
        a(f"buffer_store_dwordx4 {V(O4,4)}, v6, {S(SRD_O)}, s83 offen offset:{32*sub}{['',' sc1',' nt',' sc0 sc1',' sc1 nt'][OPT.outsc]}")
    a(f"s_cmp_lt_u32 s{sW}, 2\ns_cbranch_scc1 L_F2_{tag}")
    a("s_waitcnt vmcnt(0)")
    a(f"s_branch L_F3_{tag}\nL_F2_{tag}:\ns_waitcnt vmcnt(3)\nL_F3_{tag}:")
    group(0, 0); group(0, 1)
    a(f"s_cmp_ge_u32 s{sW}, 2\ns_cbranch_scc1 L_FE_{tag}\ns_waitcnt vmcnt(2)")
    group(1, 0); group(1, 1)
    a(f"L_FE_{tag}:")
    ts(a,14)
    endpgm(a)
```

```python
from gp_common import *
ONES="0x3f803f80"
def prologue(a):
    a("s_cmp_ge_u32 s2, 256\ns_cbranch_scc1 L_END")
    a("s_load_dwordx16 s[36:51], s[0:1], 0\ns_load_dwordx16 s[52:67], s[0:1], 64\ns_load_dwordx2 s[68:69], s[0:1], 128")
    a("v_lshrrev_b32 v1, 6, v0\nv_and_b32 v0, 63, v0")
    a(f"v_readfirstlane_b32 s{sW}, v1")
    a(f"""s_and_b32 s{sBR}, s2, 1
s_lshr_b32 s70, s2, 1
s_and_b32 s70, s70, 3
s_lshr_b32 s71, s2, 3
s_lshr_b32 s72, s71, 3
s_and_b32 s{sCG}, s71, 7
s_lshl_b32 s{sR}, s70, 2
s_add_u32 s{sR}, s{sR}, s72
s_lshr_b32 s{sKK}, s{sCG}, 2
s_and_b32 s{sDQ}, s{sCG}, 3
s_and_b32 s{sTG}, s{sW}, 3
s_lshr_b32 s{sCH}, s{sW}, 2""")
    if OPT.codepf:
        a(f"s_cmp_ge_u32 s2, {OPT.codepf}\ns_cbranch_scc1 L_NOCPF")
        a(f"s_getpc_b64 s[70:71]\nL_PC:\ns_sub_u32 s70, s70, L_PC-{K}\ns_subb_u32 s71, s71, 0")
        a(f"v_lshl_add_u32 v2, s{sW}, 6, v0\nv_lshlrev_b32 v2, 7, v2\ns_mov_b32 s72, L_END-{K}\nv_min_u32 v2, s72, v2")
        a("v_mov_b32 v3, s71\nv_add_co_u32 v2, vcc, s70, v2\nv_addc_co_u32 v3, vcc, 0, v3, vcc")
        a("global_load_dword v167, v[2:3], off\nL_NOCPF:")
    a("s_waitcnt lgkmcnt(0)")
    clk_start(a)
    srd(a, SRD_WS, pWS, SZ_WS); srd(a, SRD_X, pX, SZ_X)
    a(f"s_cmp_ge_u32 s{sW}, 8\ns_cbranch_scc1 L_LOADER")

def row_load(a, vb, srdn, soff):
    a(f"buffer_load_dwordx4 {V(vb,4)}, v1, {S(srdn)}, s{soff} offen")
    a(f"buffer_load_dword v{vb+4}, v2, {S(srdn)}, s{soff} offen")
def row_sum(a, vb, dst):
    a(f"v_mov_b32 v{dst}, 0")
    for i in range(5): a(f"v_dot2_f32_bf16 v{dst}, v{vb+i}, s70, v{dst}")

def side_issue_common(a):
    a(f"buffer_load_dword v3, off, {S(SRD_WS)}, 0 sc1")
    a("v_lshlrev_b32 v1, 4, v0\nv_lshlrev_b32 v2, 2, v0\nv_add_u32 v2, 1024, v2")
    a(f"s_lshl_b32 s70, s{sBR}, 3\ns_add_u32 s70, s70, s{sCG}\ns_lshl_b32 s70, s70, 3\ns_add_u32 s70, s70, s{sW}")
    a(f"s_lshl_b32 s71, s{sR}, 7\ns_add_u32 s74, s70, s71")
    a("s_mul_i32 s71, s74, 1280")
    row_load(a, 4, SRD_X, 71)

def stats_finish(a):
    a(f"s_mov_b32 s70, {ONES}")
    row_sum(a, 4, 14)
    wave_reduce(a, [14])
    a("v_readlane_b32 s71, v14, 63")
    a("v_mov_b32 v15, 0x3acccccd\nv_mul_f32 v14, s71, v15")
    a("v_mov_b32 v15, 0")
    for i in range(5):
        a(f"v_lshlrev_b32 v16, 16, v{4+i}\nv_and_b32 v17, 0xffff0000, v{4+i}")
        a("v_sub_f32 v16, v16, v14\nv_sub_f32 v17, v17, v14\nv_fmac_f32 v15, v16, v16\nv_fmac_f32 v15, v17, v17")
    wave_reduce(a, [15])
    a("v_readlane_b32 s71, v15, 63")
    a("v_mov_b32 v15, 0x3acccccd\nv_mov_b32 v16, 0x3727c5ac\nv_fma_f32 v15, s71, v15, v16")
    a("v_rsq_f32 v15, v15")
    a(f"v_mov_b32 v16, v14\nv_mov_b32 v17, s{sNONCE}\nv_mov_b32 v18, v15\nv_mov_b32 v19, s{sNONCE}")
    a(f"s_lshl_b32 s71, s74, 4\ns_add_u32 s71, s71, {WS_STATS}")
    a("s_mov_b64 exec, 1")
    a(f"buffer_store_dwordx4 v[16:19], off, {S(SRD_WS)}, s71 sc1")
    a("s_mov_b64 exec, -1")

CR=120
def crep_issue(a):
    lb = a.lab("L_NOREP1")
    a(f"s_lshr_b32 s75, s2, 1\ns_lshl_b32 s70, s{sW}, 7\ns_add_u32 s75, s75, s70")
    a(f"s_cmp_ge_u32 s75, 200\ns_cbranch_scc1 {lb}")
    a("s_mul_i32 s76, s75, 6554\ns_lshr_b32 s76, s76, 16\ns_mul_i32 s77, s76, 10\ns_sub_u32 s77, s75, s77")
    a("s_mul_i32 s78, s76, 40960\ns_lshl_b32 s79, s77, 7\ns_add_u32 s78, s78, s79")
    srd(a, SRD_A, pCRE, SZ_BC); srd(a, SRD_B, pCIM, SZ_BC)
    a("v_and_b32 v9, 31, v0\nv_mul_u32_u24 v9, 1280, v9\nv_lshrrev_b32 v10, 5, v0\nv_lshl_add_u32 v9, v10, 3, v9")
    for g in range(8):
        a(f"buffer_load_dwordx2 v[{CR+4*g}:{CR+4*g+1}], v9, {S(SRD_A)}, s78 offen offset:{16*g}\nbuffer_load_dwordx2 v[{CR+4*g+2}:{CR+4*g+3}], v9, {S(SRD_B)}, s78 offen offset:{16*g}")
    a(f"{lb}:")
def crep_finish(a):
    lb = a.lab("L_NOREP2")
    a(f"s_cmp_ge_u32 s75, 200\ns_cbranch_scc1 {lb}")
    a("s_waitcnt vmcnt(1)")
    a("s_mul_i32 s78, s76, 52\ns_lshr_b32 s78, s78, 8\ns_mul_i32 s79, s78, 5\ns_sub_u32 s79, s76, s79")
    a(f"s_lshl_b32 s78, s78, 2\ns_lshl_b32 s79, s79, 10\ns_add_u32 s79, s79, {WS_CREP}")
    a("s_lshl_b32 s77, s77, 3")
    a("s_mov_b32 s84, 0x05040100\ns_mov_b32 s85, 0x07060302\nv_lshlrev_b32 v2, 4, v0")
    for g in range(8):
        a("s_mul_i32 s80, s77, 6554\ns_lshr_b32 s80, s80, 16\ns_mul_i32 s81, s80, 10\ns_sub_u32 s81, s77, s81")
        a("s_lshr_b32 s82, s80, 2\ns_lshl_b32 s82, s82, 4\ns_and_b32 s80, s80, 3\ns_add_u32 s82, s82, s80\ns_add_u32 s82, s82, s78\ns_mul_i32 s82, s82, 51200")
        a("s_mul_i32 s83, s81, 5120\ns_add_u32 s82, s82, s83\ns_add_u32 s82, s82, s79")
        a("s_sub_u32 s83, s81, 3\ns_cmp_lt_u32 s83, 3\ns_cselect_b32 s83, 10240, 0\ns_add_u32 s82, s82, s83")
        a("s_sub_u32 s83, s81, 6\ns_cmp_lt_u32 s83, 2\ns_cselect_b32 s83, 15360, 0\ns_sub_u32 s82, s82, s83")
        o = 152 + 4*(g & 1); r = CR+4*g
        a(f"v_perm_b32 v{o}, v{r+2}, v{r}, s84\nv_perm_b32 v{o+1}, v{r+2}, v{r}, s85\nv_perm_b32 v{o+2}, v{r+3}, v{r+1}, s84\nv_perm_b32 v{o+3}, v{r+3}, v{r+1}, s85")
        a(f"buffer_store_dwordx4 v[{o}:{o+3}], v2, {S(SRD_WS)}, s82 offen sc1")
        a("s_add_u32 s77, s77, 1")
    a(f"{lb}:")

def touch_p1(a, G):
    if not OPT.touch: return 0
    n = 0
    offs = [0] if OPT.touch == 1 else [0, 64]
    a(f"s_lshr_b32 s70, s{sR}, 2\ns_lshl_b32 s70, s70, 9\ns_lshr_b32 s71, s2, 3\ns_lshl_b32 s72, s71, 4\ns_add_u32 s70, s70, s72\ns_mul_i32 s70, s70, 1280")
    a(f"s_add_u32 s72, s{sW}, 2\ns_lshl_b32 s72, s72, 7\ns_add_u32 s70, s70, s72")
    a("v_and_b32 v108, 15, v0\nv_mul_u32_u24 v108, 1280, v108")
    for o in offs:
        a(f"buffer_load_dword v110, v108, {S(SRD_X)}, s70 offen offset:{o}"); n += 1
    if G:
        a(f"s_add_u32 s72, s{sW}, 2\ns_lshl_b32 s72, s72, 6\ns_add_u32 s72, s72, s71\ns_mul_i32 s72, s72, 3072")
        a("v_min_u32 v108, 47, v0\nv_cmp_le_u32 vcc, 24, v108\nv_cndmask_b32 v109, 0, 1, vcc\nv_mul_u32_u24 v109, 95232, v109\nv_lshl_add_u32 v108, v108, 7, v109")
        for o in offs:
            a(f"buffer_load_dword v110, v108, {S(SRD_C)}, s72 offen offset:{o}"); n += 1
    else:
        a(f"s_mul_i32 s72, s71, {20*1280}\ns_add_u32 s70, s{sW}, 2\ns_lshl_b32 s70, s70, 7\ns_add_u32 s72, s72, s70")
        a("v_and_b32 v108, 31, v0\nv_min_u32 v108, 19, v108\nv_mul_u32_u24 v108, 1280, v108")
        a(f"s_mov_b32 s{SRD_A}, s{pBRE}\ns_mov_b32 s{SRD_A+1}, s{pBRE+1}\ns_mov_b32 s{SRD_B}, s{pBIM}\ns_mov_b32 s{SRD_B+1}, s{pBIM+1}")
        a(f"s_mov_b32 s{SRD_A+2}, {SZ_BC}\ns_mov_b32 s{SRD_A+3}, 0x20000\ns_mov_b32 s{SRD_B+2}, {SZ_BC}\ns_mov_b32 s{SRD_B+3}, 0x20000")
        for o in offs:
            a(f"buffer_load_dword v110, v108, {S(SRD_A)}, s72 offen offset:{o}\nbuffer_load_dword v111, v108, {S(SRD_B)}, s72 offen offset:{o}"); n += 2
    return n

def side_G(a):
    srd(a, SRD_C, pW1, SZ_W1)
    a(f"s_mul_i32 s70, s{sR}, 40\ns_mul_i32 s71, s{sW}, 5\ns_add_u32 s70, s70, s71\ns_mul_i32 s70, s70, 3072\ns_mul_i32 s71, s{sCG}, 384\ns_add_u32 s70, s70, s71")
    a("v_lshlrev_b32 v18, 3, v0")
    a("s_mov_b32 exec_lo, -1\ns_mov_b32 exec_hi, 0xffff")
    for i in range(5):
        a(f"buffer_load_dwordx2 v[{24+2*i}:{25+2*i}], v18, {S(SRD_C)}, s70 offen")
        if i < 4: a("s_add_u32 s70, s70, 3072")
    a("s_mov_b64 exec, -1")
    nt = touch_p1(a, True)
    a(f"s_waitcnt vmcnt({5+nt})")
    a(f"v_readfirstlane_b32 s{sNONCE}, v3")
    a(f"s_mul_i32 s{sNONCE}, s{sNONCE}, 1664525\ns_add_u32 s{sNONCE}, s{sNONCE}, 1013904223")
    stats_finish(a)
    a(f"s_waitcnt vmcnt({1+nt})")
    a("s_mov_b32 s70, 0x00003f80\ns_mov_b32 s71, 0x3f800000")
    a("v_mov_b32 v36, 0\nv_mov_b32 v37, 0\nv_mov_b32 v38, 0\nv_mov_b32 v39, 0")
    for i in range(5):
        a(f"v_dot2_f32_bf16 v36, v{24+2*i}, s70, v36\nv_dot2_f32_bf16 v37, v{24+2*i}, s71, v37")
        a(f"v_dot2_f32_bf16 v38, v{25+2*i}, s70, v38\nv_dot2_f32_bf16 v39, v{25+2*i}, s71, v39")
    xcc_publish(a)
    a(f"s_mul_i32 s70, s{sW}, 768\ns_add_u32 s70, s70, {L_CSST}\nv_add_u32 v18, s70, v1")
    a("s_mov_b32 exec_lo, -1\ns_mov_b32 exec_hi, 0xffff")
    a("ds_write_b128 v18, v[36:39]")
    a("s_mov_b64 exec, -1")
    if not OPT.nocrep: crep_issue(a)
    else: a('s_mov_b32 s75, 200')

def css_row(a, rowreg, vb, tag):
    a(f"s_cmp_ge_u32 s{rowreg}, 80\ns_cselect_b32 s70, 1, 0\ns_cselect_b64 s[{SRD_C}:{SRD_C+1}], s[{pBIM}:{pBIM+1}], s[{pBRE}:{pBRE+1}]")
    a(f"s_mov_b32 s{SRD_C+2}, {SZ_BC}\ns_mov_b32 s{SRD_C+3}, 0x20000")
    a(f"s_mul_i32 s71, s70, 80\ns_sub_u32 s{rowreg}, s{rowreg}, s71\ns_mul_i32 s71, s{sCG}, 80\ns_add_u32 s{rowreg}, s{rowreg}, s71")
    a(f"s_mul_i32 s71, s{rowreg}, 1280")
    row_load(a, vb, SRD_C, 71)
    a(f"s_mul_i32 s70, s70, 640\ns_add_u32 s{rowreg}, s{rowreg}, s70")
def css_fin(a, rowreg, vb, dst):
    a(f"v_readlane_b32 s71, v{dst}, 63")
    a(f"s_lshl_b32 s72, s{rowreg}, 3\ns_add_u32 s72, s72, {WS_CSS}")
    a(f"v_mov_b32 v{dst}, s71\nv_mov_b32 v{dst+1}, s{sNONCE}")
    a("s_mov_b64 exec, 1")
    a(f"buffer_store_dwordx2 v[{dst}:{dst+1}], off, {S(SRD_WS)}, s72 sc1")
    a("s_mov_b64 exec, -1")

KC=96
def side_S(a):
    a(f"s_mul_i32 s86, s{sR}, 10\ns_add_u32 s86, s86, s{sW}")
    css_row(a, 86, 24, "a")
    a(f"s_cmp_ge_u32 s{sW}, 2\ns_cbranch_scc1 L_S_NOROW2")
    a(f"s_mul_i32 s87, s{sR}, 10\ns_add_u32 s87, s87, s{sW}\ns_add_u32 s87, s87, 8")
    css_row(a, 87, 30, "b")
    a("L_S_NOROW2:")
    nt = touch_p1(a, False)
    a(f"s_waitcnt vmcnt({nt})")
    a(f"v_readfirstlane_b32 s{sNONCE}, v3")
    a(f"s_mul_i32 s{sNONCE}, s{sNONCE}, 1664525\ns_add_u32 s{sNONCE}, s{sNONCE}, 1013904223")
    stats_finish(a)
    a(f"s_mov_b32 s70, {ONES}")
    row_sum(a, 24, 14); wave_reduce(a, [14]); css_fin(a, 86, 24, 14)
    a(f"s_cmp_ge_u32 s{sW}, 2\ns_cbranch_scc1 L_S_NOROW2b")
    row_sum(a, 30, 14); wave_reduce(a, [14]); css_fin(a, 87, 30, 14)
    a("L_S_NOROW2b:")
    xcc_publish(a)

def lam_issue(a):
    a(f"v_lshrrev_b32 v13, 5, v42\nv_and_b32 v14, 31, v42\nv_lshrrev_b32 v14, 1, v14\nv_lshl_add_u32 v13, v13, 4, v14\ns_mul_i32 s73, s{sCG}, 80\nv_add_u32 v13, s73, v13\nv_lshlrev_b32 v13, 1, v13")
    a(f"global_load_ushort v44, v13, s[{pLRE}:{pLRE+1}]\nglobal_load_ushort v45, v13, s[{pLIM}:{pLIM+1}]\nglobal_load_ushort v46, v13, s[{pLDT}:{pLDT+1}]")
def lam_finish(a):
    lre, lim, ldt = 44, 45, 46
    ar, kA, k1, k2 = 48, 49, 50, 51
    a("v_and_b32 v82, 1, v42\nv_lshlrev_b32 v82, 31, v82\nv_or_b32 v82, 0x3f800000, v82")
    a(f"v_lshlrev_b32 v{lre}, 16, v{lre}\nv_lshlrev_b32 v{lim}, 16, v{lim}\nv_lshlrev_b32 v{ldt}, 16, v{ldt}")
    a(f"v_mul_f32 v{ldt}, 0x3fb8aa3b, v{ldt}\nv_exp_f32 v{ldt}, v{ldt}")
    a(f"v_cvt_pk_bf16_f32 v{ldt}, v{ldt}, v{ldt}\nv_lshlrev_b32 v{ldt}, 16, v{ldt}")
    a(f"v_mul_f32 v52, v{ldt}, v{lre}\nv_mul_f32 v53, v{ldt}, v{lim}")
    a("v_mul_f32 v52, 0x3fb8aa3b, v52\nv_exp_f32 v52, v52")
    a("v_mul_f32 v53, 0.15915494, v53\nv_rndne_f32 v54, v53\nv_sub_f32 v53, v53, v54")
    a("v_cos_f32 v54, v53\nv_sin_f32 v55, v53")
    a(f"v_mul_f32 v{ar}, v52, v54\nv_mul_f32 v55, v52, v55")
    a(f"v_add_f32 v54, -1.0, v{ar}")
    a(f"v_mul_f32 v56, v{lre}, v{lre}\nv_fmac_f32 v56, v{lim}, v{lim}\nv_rcp_f32 v56, v56")
    a(f"v_mul_f32 v52, v54, v{lre}\nv_fmac_f32 v52, v55, v{lim}")
    a(f"v_mul_f32 v53, v55, v{lre}\nv_fma_f32 v53, -v54, v{lim}, v53")
    a("v_add_f32 v56, v56, v56")
    a("v_mul_f32 v52, v52, v56\nv_mul_f32 v53, v53, v56")
    a(f"v_mul_f32 v{k1}, v52, v82\nv_sub_f32 v{k2}, 0, v53\nv_mul_f32 v{kA}, v55, v82")
    a(f"v_lshlrev_b32 v13, 4, v42\nv_add_u32 v13, {L_KC}, v13\nds_write_b128 v13, v[48:51]")
    a(f"v_mov_b32 v80, v{ar}\nv_mov_b32 v81, v55")
    for _ in range(4):
        a("v_mul_f32 v54, v81, v81\nv_mul_f32 v56, v80, v81\nv_fma_f32 v80, v80, v80, -v54\nv_add_f32 v81, v56, v56")

def xcc_publish(a):
    lb = a.lab("L_XCC")
    a(f"s_cmp_lg_u32 s{sW}, 0\ns_cbranch_scc1 {lb}")
    a(f"s_getreg_b32 s70, hwreg(HW_REG_XCC_ID, 0, 4)\ns_lshl_b32 s71, s2, 3\ns_add_u32 s71, s71, {WS_XCC}")
    a(f"v_mov_b32 v14, s70\nv_mov_b32 v15, s{sNONCE}\ns_mov_b64 exec, 1\nbuffer_store_dwordx2 v[14:15], off, {S(SRD_WS)}, s71 sc1\ns_mov_b64 exec, -1")
    a(f"{lb}:")

def colsum_reduce_G(a):
    a(f"s_mul_i32 s70, s{sW}, 96\ns_add_u32 s70, s70, {L_CSST}\nv_lshl_add_u32 v12, v0, 2, s70")
    a("s_mov_b32 exec_lo, 0xffffff\ns_mov_b32 exec_hi, 0")
    for w in range(8): a(f"ds_read_b32 v{108+w}, v12 offset:{768*w}")
    a(f"s_mul_i32 s70, s{sR}, 12288\ns_mul_i32 s71, s{sCG}, 1536\ns_add_u32 s70, s70, s71\ns_mul_i32 s71, s{sW}, 192\ns_add_u32 s70, s70, s71\ns_add_u32 s70, s70, {WS_CSG}")
    a(f"v_lshlrev_b32 v12, 3, v0\nv_mov_b32 v117, s{sNONCE}")
    a("s_waitcnt lgkmcnt(0)")
    a("v_add_f32 v108, v108, v109\nv_add_f32 v110, v110, v111\nv_add_f32 v112, v112, v113\nv_add_f32 v114, v114, v115\nv_add_f32 v108, v108, v110\nv_add_f32 v112, v112, v114\nv_add_f32 v116, v108, v112")
    a(f"buffer_store_dwordx2 v[116:117], v12, {S(SRD_WS)}, s70 offen sc1")
    a("s_mov_b64 exec, -1")
```

```python
import sys
from gp_common import *
import gp_stage1 as s1, gp_loader as ld, gp_compute as cp, gp_phase2 as p2
from hazard import fix
def gen(stop=None, barpos=1):
    a = Asm()
    kernel_begin(a, K)
    s1.prologue(a)
    ts(a,0)
    s1.side_issue_common(a)
    a(f"s_cmp_eq_u32 s{sBR}, 1\ns_cbranch_scc1 L_CG")
    s1.side_S(a)
    s1.tlb_touch(a)
    cp.p1_init(a, False)
    a(f"s_cmp_eq_u32 s{sCH}, 1\ns_cbranch_scc1 L_CS1")
    for ch in range(2):
        if ch: a("L_CS1:")
        NS = 3 - ch
        cp.p1_loop(a, False, NS, f"S{ch}", barpos)
        if stop == "p1":
            a("s_barrier\ns_endpgm"); continue
        cp.epi_S(a, NS, f"S{ch}")
        if stop == "epi":
            cp.publish_flag(a, 0); a("s_waitcnt vmcnt(0)\ns_endpgm"); continue
        p2.phase2(a, False, ch, f"S{ch}")
        if ch == 0: a("s_branch L_FIN_S")
    if stop is None:
        a("L_FIN_S:")
        p2.final(a, False, "S")
    a("L_CG:")
    s1.side_G(a)
    s1.tlb_touch(a)
    cp.p1_init(a, True)
    cp.p1_loop(a, True, 3, "G", barpos)
    if stop == "p1": a("s_barrier\ns_endpgm")
    else:
        cp.epi_G(a)
        if stop == "epi":
            cp.publish_flag(a, 1); a("s_waitcnt vmcnt(0)\ns_endpgm")
        else:
            p2.phase2(a, True, 0, "G")
            p2.final(a, True, "G")
    a("L_LOADER:")
    a(f"s_cmp_eq_u32 s{sBR}, 1\ns_cbranch_scc1 L_LOADER_G")
    ld.loader(a, False, stop)
    ld.loader(a, True, stop)
    a("L_END:\ns_endpgm")
    body = fix(a.text(), True)
    PROF.inld=False
    d = Asm(); kernel_desc(d, K, 168, accum=168)
    return assemble_file([(K, (256,1,1), (768,1,1), 163840)], body, d.text())
if __name__ == "__main__":
    stop = sys.argv[2] if len(sys.argv) > 2 and sys.argv[2] != "none" else None
    PROF.on = "prof" in sys.argv or "prof1" in sys.argv
    PROF.mode = 1 if "prof1" in sys.argv else 0
    for x in sys.argv[3:]:
        if "=" in x:
            k, v = x.split("="); setattr(OPT, k, int(v))
    open(sys.argv[1], "w").write(gen(stop))
```

```python
from asmlib import *
K = NAME + "_kernel"
WS_NONCE=0x0; WS_F0=0x1000; WS_STATS=0x2000; WS_CSS=0xA000; WS_XCC=0xE000; WS_CSG=0x60000; WS_EG=0x20000
WS_F1=0x48000; WS_CREP=0x100000; WS_T=0x300000; WS_X=0x1000000; WS_F2=0x90000; WS_DBG=0x4000000
SLOT=40960
L_W0=122880
L_ESEG=148480
L_CSST=122880
L_TAB=153600
L_TT=L_TAB
L_TZ=L_TT+2048
L_WT=L_TAB+2304
L_ST=L_WT+3072
L_KC=L_ST+1024
L_DB=L_KC+2560
L_RS=L_DB+640
L_FLG=L_RS+512
L_END=L_FLG+16
assert L_END <= 163840
P2SLOT={True:[122880,0,30720,61440,92160], False:[122880,0,25600,51200,76800]}
L_TR=81920
sLOC=96; sWG=2; sW=3; sBR=4; sR=5; sCG=6; sTG=7; sCH=8; sKK=9; sDQ=10; sNONCE=11
SRD_WS=12; SRD_X=16; SRD_A=20; SRD_B=24; SRD_C=28; SRD_O=32
pX=36; pLRE=38; pLIM=40; pBRE=42; pBIM=44; pCRE=46; pCIM=48; pLDT=50; pDSK=52; pBX=54; pW1=56; pB1=58; pW2=60; pB2=62; pOUT=64; pDBG=66; pWS=68
SZ_X=2048*1280; SZ_BC=640*1280; SZ_W1=640*3072; SZ_W2=1536*1280; SZ_OUT=2048*2560; SZ_WS=0x10000000
def srd(a, d, p, size):
    a(f"s_mov_b32 s{d}, s{p}\ns_mov_b32 s{d+1}, s{p+1}\ns_mov_b32 s{d+2}, {size}\ns_mov_b32 s{d+3}, 0x20000")
def S(d): return f"s[{d}:{d+3}]"
def V(b, n): return f"v[{b}:{b+n-1}]" if n > 1 else f"v{b}"
def wave_reduce(a, regs):
    for ctl in ["row_shr:1 row_mask:0xf bank_mask:0xf bound_ctrl:1","row_shr:2 row_mask:0xf bank_mask:0xf bound_ctrl:1",
                "row_shr:4 row_mask:0xf bank_mask:0xf bound_ctrl:1","row_shr:8 row_mask:0xf bank_mask:0xf bound_ctrl:1",
                "row_bcast:15 row_mask:0xa bank_mask:0xf","row_bcast:31 row_mask:0xc bank_mask:0xf"]:
        for r in regs:
            a(f"v_add_f32_dpp v{r}, v{r}, v{r} {ctl}")

class PROF:
    on=False; mode=0; inld=False
TSREG=[0,1,54,55,66,67,28,97,98,99,38,39,40,41,50,51]
def ts(a,k,force=False):
    if OPT.p2ts and not force and not PROF.inld and k in (1,2,3,4,5,10,11): return
    if PROF.mode==1 and not force and k in (7,8,9,10,11,12,13,14) and PROF.inld: return
    if PROF.on: a(f"s_memrealtime s[100:101]\ns_waitcnt lgkmcnt(0)\ns_mov_b32 s{TSREG[k]}, s100")
def clk_start(a):
    if OPT.clk: a("s_memtime s[98:99]\ns_memrealtime s[0:1]\ns_waitcnt lgkmcnt(0)\ns_mov_b32 s97, s98\ns_mov_b32 s1, s0")
def clk_end(a):
    lb = a.lab("L_CLK")
    a(f"s_cmp_lg_u32 s{sW}, 0\ns_cbranch_scc1 {lb}")
    a(f"s_add_u32 s70, s2, 2\ns_and_b32 s70, s70, 255\ns_cmp_ge_u32 s70, 4\ns_cbranch_scc1 {lb}")
    a("s_memtime s[98:99]\ns_memrealtime s[100:101]\ns_waitcnt lgkmcnt(0)\ns_sub_u32 s98, s98, s97")
    a(f"v_mov_b32 v20, s98\nv_mov_b32 v21, s1\nv_mov_b32 v22, s100\nv_mov_b32 v23, s2\ns_lshl_b32 s70, s70, 4\nv_mov_b32 v24, s70\ns_mov_b64 exec, 1")
    a(f"global_store_dwordx4 v24, v[20:23], s[{pDBG}:{pDBG+1}]\ns_waitcnt vmcnt(0)\n{lb}:")
def endpgm(a):
    if OPT.clk and not PROF.inld: clk_end(a)
    if PROF.on:
        for k,r in enumerate(TSREG): a(f"v_writelane_b32 v20, s{r}, {k}")
        a(f"s_mul_i32 s70, s2, 12\ns_add_u32 s70, s70, s{sW}\ns_lshl_b32 s70, s70, 6\ns_add_u32 s70, s70, {WS_DBG}\nv_lshlrev_b32 v21, 2, v0\ns_mov_b32 exec_lo, 0xffff\ns_mov_b32 exec_hi, 0")
        a(f"buffer_store_dword v20, v21, {S(SRD_WS)}, s70 offen\ns_waitcnt vmcnt(0)")
    a("s_endpgm")

class OPT:
    touch=0
    touchw2=4
    nocomp=0
    noload=0
    rot=1
    touchc=1
    local=1
    cpoll=4
    exwarm=0
    exsleep=2
    p2poll=4
    p2d2=0
    clk=0
    tsc=3
    isc=3
    wnt=2
    codepf=0
    tq0=1
    tqr=3
    p2ts=0
    pfj=5
    outsc=0
    locx=1
    nocrep=0
    crepit=1
    f0late=1
```

```python
from asmlib import *
K = NAME + "_kernel"
WS_NONCE=0x0; WS_F0=0x1000; WS_STATS=0x2000; WS_CSS=0xA000; WS_XCC=0xE000; WS_CSG=0x60000; WS_EG=0x20000
WS_F1=0x48000; WS_CREP=0x100000; WS_T=0x300000; WS_X=0x1000000; WS_F2=0x90000; WS_DBG=0x4000000
SLOT=40960
L_W0=122880
L_ESEG=148480
L_CSST=122880
L_CRS=131072
L_TAB=153600
L_TT=L_TAB
L_TZ=L_TT+2048
L_WT=L_TAB+2304
L_ST=L_WT+3072
L_KC=L_ST+1024
L_DB=L_KC+2560
L_RS=L_DB+640
L_FLG=L_RS+512
L_END=L_FLG+16
assert L_END <= 163840
P2SLOT={True:[122880,0,30720,61440,92160], False:[122880,0,25600,51200,76800]}
L_TR=81920
sLOC=96; sWG=2; sW=3; sBR=4; sR=5; sCG=6; sTG=7; sCH=8; sKK=9; sDQ=10; sNONCE=11
SRD_WS=12; SRD_X=16; SRD_A=20; SRD_B=24; SRD_C=28; SRD_O=32
pX=36; pLRE=38; pLIM=40; pBRE=42; pBIM=44; pCRE=46; pCIM=48; pLDT=50; pDSK=52; pBX=54; pW1=56; pB1=58; pW2=60; pB2=62; pOUT=64; pDBG=66; pWS=68
SZ_X=2048*1280; SZ_BC=640*1280; SZ_W1=640*3072; SZ_W2=1536*1280; SZ_OUT=2048*2560; SZ_WS=0x10000000
def srd(a, d, p, size):
    a(f"s_mov_b32 s{d}, s{p}\ns_mov_b32 s{d+1}, s{p+1}\ns_mov_b32 s{d+2}, {size}\ns_mov_b32 s{d+3}, 0x20000")
def S(d): return f"s[{d}:{d+3}]"
def V(b, n): return f"v[{b}:{b+n-1}]" if n > 1 else f"v{b}"
def wave_reduce(a, regs):
    for ctl in ["row_shr:1 row_mask:0xf bank_mask:0xf bound_ctrl:1","row_shr:2 row_mask:0xf bank_mask:0xf bound_ctrl:1",
                "row_shr:4 row_mask:0xf bank_mask:0xf bound_ctrl:1","row_shr:8 row_mask:0xf bank_mask:0xf bound_ctrl:1",
                "row_bcast:15 row_mask:0xa bank_mask:0xf","row_bcast:31 row_mask:0xc bank_mask:0xf"]:
        for r in regs:
            a(f"v_add_f32_dpp v{r}, v{r}, v{r} {ctl}")

class PROF:
    on=False; mode=0; inld=False
TSREG=[0,1,54,55,66,67,28,97,98,99,38,39,40,41,50,51]
def ts(a,k,force=False):
    if OPT.p2ts and not force and not PROF.inld and k in (1,2,3,4,5,10,11): return
    if PROF.mode==1 and not force and k in (7,8,9,10,11,12,13,14) and PROF.inld: return
    if PROF.on: a(f"s_memrealtime s[100:101]\ns_waitcnt lgkmcnt(0)\ns_mov_b32 s{TSREG[k]}, s100")
def clk_start(a):
    if OPT.clk: a("s_memtime s[98:99]\ns_memrealtime s[0:1]\ns_waitcnt lgkmcnt(0)\ns_mov_b32 s97, s98\ns_mov_b32 s1, s0")
def clk_end(a):
    lb = a.lab("L_CLK")
    a(f"s_cmp_lg_u32 s{sW}, 0\ns_cbranch_scc1 {lb}")
    a(f"s_add_u32 s70, s2, 2\ns_and_b32 s70, s70, 255\ns_cmp_ge_u32 s70, 4\ns_cbranch_scc1 {lb}")
    a("s_memtime s[98:99]\ns_memrealtime s[100:101]\ns_waitcnt lgkmcnt(0)\ns_sub_u32 s98, s98, s97")
    a(f"v_mov_b32 v20, s98\nv_mov_b32 v21, s1\nv_mov_b32 v22, s100\nv_mov_b32 v23, s2\ns_lshl_b32 s70, s70, 4\nv_mov_b32 v24, s70\ns_mov_b64 exec, 1")
    a(f"global_store_dwordx4 v24, v[20:23], s[{pDBG}:{pDBG+1}]\ns_waitcnt vmcnt(0)\n{lb}:")
def endpgm(a):
    if OPT.clk and not PROF.inld: clk_end(a)
    if PROF.on:
        for k,r in enumerate(TSREG): a(f"v_writelane_b32 v20, s{r}, {k}")
        a(f"s_mul_i32 s70, s2, 12\ns_add_u32 s70, s70, s{sW}\ns_lshl_b32 s70, s70, 6\ns_add_u32 s70, s70, {WS_DBG}\nv_lshlrev_b32 v21, 2, v0\ns_mov_b32 exec_lo, 0xffff\ns_mov_b32 exec_hi, 0")
        a(f"buffer_store_dword v20, v21, {S(SRD_WS)}, s70 offen\ns_waitcnt vmcnt(0)")
    a("s_endpgm")

class OPT:
    touch=0
    touchw2=5
    nocomp=0
    noload=0
    rot=1
    touchc=1
    local=1
    cpoll=4
    exwarm=0
    exsleep=2
    p2poll=4
    p2d2=0
    clk=0
    warmB=0
    tlb=0
    tsc=0
    isc=0
    wnt=2
    codepf=0
    tq0=1
    tqr=3
    p2ts=0
    pfj=5
    outsc=2
    locx=1
    nocrep=0
    crepit=1
    f0late=1
    pubsc=2
    tsc0=1
    b0early=3
    crep8=1
    tlate=0
    o64=1
    parsc=2
```

```python
from gp_common import *
from gp_stage1 import KC, colsum_reduce_G, crep_finish, crep_finish2
FA=16; FB=32; ACC1=48
AX=4
AW=8
sIT=70; sSL=71; sDL=72; sT=73; sT2=74
MF="v_mfma_f32_32x32x16_bf16"
def pi_lane(a, dst, t):
    a(f"v_and_b32 v{dst}, 3, v0\nv_bfe_u32 v{t}, v0, 2, 1\nv_lshl_add_u32 v{dst}, v{t}, 4, v{dst}\nv_bfe_u32 v{t}, v0, 3, 2\nv_lshl_add_u32 v{dst}, v{t}, 2, v{dst}")
def p1_init(a, G):
    if G: a("v_and_b32 v12, 31, v0")
    else: pi_lane(a, 12, 13)
    a(f"v_bfe_u32 v13, v12, 1, 3")
    a(f"s_lshl_b32 s{sT}, s{sTG}, 5\nv_add_u32 v12, s{sT}, v12\nv_lshlrev_b32 v12, 7, v12")
    a(f"v_lshrrev_b32 v14, 5, v0\nv_xor_b32 v13, v13, v14\nv_lshl_add_u32 v12, v13, 4, v12")
    a(f"v_add_u32 v{AX}, {2*SLOT}, v12")
    for ks in range(1, 4): a(f"v_xor_b32 v{AX+ks}, {32*ks}, v{AX}")
    if G:
        a("v_bfe_u32 v12, v0, 2, 2\nv_lshrrev_b32 v13, 5, v0\nv_lshl_add_u32 v13, v13, 3, v12\nv_mul_u32_u24 v13, 384, v13")
        a("v_bfe_u32 v14, v0, 4, 1\nv_lshl_add_u32 v13, v14, 5, v13\nv_and_b32 v14, 3, v0\nv_lshl_add_u32 v13, v14, 3, v13")
        a(f"v_add_u32 v13, {2*SLOT+16384}, v13")
        a("v_bfe_u32 v14, v0, 3, 1")
        for st in range(3):
            a(f"s_mul_i32 s{sT}, s{sCH}, 3\ns_add_u32 s{sT}, s{sT}, {st}")
            a(f"v_xor_b32 v15, s{sT}, v14\nv_lshl_add_u32 v{AW+st}, v15, 6, v13")
    else:
        a("v_bfe_u32 v12, v0, 1, 3\nv_and_b32 v13, 1, v0\nv_lshl_add_u32 v12, v13, 3, v12\nv_bfe_u32 v13, v0, 4, 1\nv_lshl_add_u32 v12, v13, 4, v12")
        a("v_bfe_u32 v13, v12, 1, 3\nv_lshrrev_b32 v14, 5, v0\nv_xor_b32 v13, v13, v14\nv_lshlrev_b32 v12, 7, v12\nv_lshl_add_u32 v12, v13, 4, v12")
        a(f"s_mul_i32 s{sT}, s{sCH}, {3*4096}\ns_add_u32 s{sT}, s{sT}, {2*SLOT+16384}\nv_add_u32 v{AW}, s{sT}, v12")
        for ks in range(1, 4): a(f"v_xor_b32 v{AW+ks}, {32*ks}, v{AW}")
    for i in range(48): a(f"v_mov_b32 v{ACC1+i}, 0")
def p1_reads(G, NS, ks, fs):
    if OPT.nocomp & 1: return []
    r = [f"ds_read_b128 {V(fs,4)}, v{AX+ks}"]
    for st in range(NS):
        if G:
            r.append(f"ds_read_b64_tr_b16 {V(fs+4+4*st,2)}, v{AW+st} offset:{ks*6144}")
            r.append(f"ds_read_b64_tr_b16 {V(fs+6+4*st,2)}, v{AW+st} offset:{ks*6144+1536}")
        else:
            r.append(f"ds_read_b128 {V(fs+4+4*st,4)}, v{AW+ks} offset:{4096*st}")
    return r
def p1_mfma(G, st, fs):
    if OPT.nocomp & 2: return "s_nop 0"
    acc = V(ACC1+16*st, 16)
    if G: return f"{MF} {acc}, {V(fs+4+4*st,4)}, {V(fs,4)}, {acc}"
    return f"{MF} {acc}, {V(fs,4)}, {V(fs+4+4*st,4)}, {acc}"
def interleave(a, mf, reads):
    n = len(mf); per = -(-len(reads)//max(1, n-1)) if n > 1 else len(reads)
    k = 0
    for i, m in enumerate(mf):
        a(m)
        if i < n-1 or n == 1:
            for r in reads[k:k+per]: a(r)
            k += per
    for r in reads[k:]: a(r)
def p1_loop(a, G, NS, tag, barpos=1):
    nadr = 7 if G else 8
    adr = [AX+i for i in range(4)] + [AW+i for i in range(3 if G else 4)]
    ts(a,1)
    a("s_waitcnt lgkmcnt(0)\ns_barrier")
    ts(a,2)
    for r in p1_reads(G, NS, 0, FA): a(r)
    if G: colsum_reduce_G(a)
    a(f"s_mov_b32 s{sIT}, 0\ns_mov_b32 s{sSL}, 2")
    a(f"L_P1_{tag}:")
    sets = [FA, FB]
    for ks in range(3):
        a("s_waitcnt lgkmcnt(0)")
        rd = p1_reads(G, NS, ks+1, sets[(ks+1) & 1])
        interleave(a, [p1_mfma(G, st, sets[ks & 1]) for st in range(NS)], rd)
        if ks == 2:
            a(f"s_mov_b32 s{sDL}, {SLOT}\ns_cmp_eq_u32 s{sSL}, 2\ns_cselect_b32 s{sDL}, {(-2*SLOT) & 0xffffffff}, s{sDL}\ns_cselect_b32 s{sSL}, -1, s{sSL}\ns_add_u32 s{sSL}, s{sSL}, 1")
            for r in adr: a(f"v_add_u32 v{r}, s{sDL}, v{r}")
    a("s_waitcnt lgkmcnt(0)")
    mf = [p1_mfma(G, st, FB) for st in range(NS)]
    for m in mf[:barpos]: a(m)
    a(f"s_cmp_eq_u32 s{sIT}, 9\ns_cbranch_scc1 L_P1_{tag}_last")
    if G:
        if OPT.crep8:
            assert OPT.crepit >= 1
            a(f"s_cmp_lg_u32 s{sIT}, {OPT.crepit-1}\ns_cbranch_scc1 L_P1_{tag}_nd\ns_waitcnt vmcnt(0)\nL_P1_{tag}_nd:")
        a(f"s_cmp_lg_u32 s{sIT}, {OPT.crepit}\ns_cbranch_scc1 L_P1_{tag}_nc")
        if OPT.crep8: crep_finish2(a)
        else: crep_finish(a)
        a(f"L_P1_{tag}_nc:")
    a(f"s_cmp_lg_u32 s{sIT}, {OPT.crepit+2}\ns_cbranch_scc1 L_P1_{tag}_nw\ns_waitcnt vmcnt(0)\nL_P1_{tag}_nw:")
    if G and OPT.touchw2:
        a(f"s_cmp_lg_u32 s{sIT}, {OPT.touchw2}\ns_cbranch_scc1 L_P1_{tag}_nt")
        a(f"s_lshr_b32 s{sT}, s2, 3\ns_mul_i32 s{sT}, s{sT}, 48\ns_mul_i32 s{sT2}, s{sW}, 6\ns_add_u32 s{sT}, s{sT}, s{sT2}\ns_mul_i32 s{sT}, s{sT}, 1280")
        a(f"v_min_u32 v2, 59, v0\nv_lshlrev_b32 v2, 7, v2")
        srd(a, SRD_O, pW2, SZ_W2)
        a(f"buffer_load_dword v3, v2, {S(SRD_O)}, s{sT} offen")
        if OPT.touch == 2: a(f"buffer_load_dword v3, v2, {S(SRD_O)}, s{sT} offen offset:64")
        a(f"L_P1_{tag}_nt:")
    a("s_barrier")
    a(f"s_cmp_lg_u32 s{sIT}, {OPT.crepit+2}\ns_cbranch_scc1 L_P1_{tag}_nf\ns_cmp_lg_u32 s{sW}, 0\ns_cbranch_scc1 L_P1_{tag}_nf")
    a(f"v_mov_b32 v2, s{sNONCE}\ns_lshl_b32 s{sT}, s2, 2\ns_add_u32 s{sT}, s{sT}, {WS_F0}\ns_mov_b64 exec, 1")
    a(f"buffer_store_dword v2, off, {S(SRD_WS)}, s{sT} sc1\ns_mov_b64 exec, -1\nL_P1_{tag}_nf:")
    rd = p1_reads(G, NS, 0, FA)
    k = 0; rest = mf[barpos:]
    per = -(-len(rd)//(len(rest)+1))
    for r in rd[:per]: a(r)
    k = per
    for m in rest:
        a(m)
        for r in rd[k:k+per]: a(r)
        k += per
    a(f"s_add_u32 s{sIT}, s{sIT}, 1\ns_branch L_P1_{tag}")
    a(f"L_P1_{tag}_last:")
    for m in mf[barpos:]: a(m)
    ts(a,3)

XB=16; YB=40
WR=64
ACC2=88
def t_slot(a, dst, br):
    a(f"s_lshl_b32 s{dst}, s{sR}, 3\ns_add_u32 s{dst}, s{dst}, s{sCG}\ns_lshl_b32 s{dst}, s{dst}, 2\ns_add_u32 s{dst}, s{dst}, s{sTG}\ns_lshl_b32 s{dst}, s{dst}, 1\ns_add_u32 s{dst}, s{dst}, s{sCH}")
    a(f"s_mul_i32 s{dst}, s{dst}, 6144\ns_add_u32 s{dst}, s{dst}, {WS_T + br*16*8*8*6144}")
def f1_addr(a, dst, br):
    a(f"s_lshl_b32 s{dst}, s{sR}, 1\ns_add_u32 s{dst}, s{dst}, s{sKK}\ns_lshl_b32 s{dst}, s{dst}, 2\ns_add_u32 s{dst}, s{dst}, s{sTG}\ns_lshl_b32 s{dst}, s{dst}, 1\ns_add_u32 s{dst}, s{dst}, s{sCH}")
    a(f"s_lshl_b32 s{dst}, s{dst}, 7\ns_add_u32 s{dst}, s{dst}, {WS_F1 + br*256*128}")
def publish_frags(a, br, nfr):
    sA=76; sF=77
    t_slot(a, sA, br)
    a("v_lshlrev_b32 v1, 4, v0")
    l1, l2 = a.lab("L_PUBL"), a.lab("L_PUBD")
    a(f"s_cmp_eq_u32 s{sLOC}, 1\ns_cbranch_scc1 {l1}")
    for loc in (0, 1):
        sc = " sc1" if not loc else ["", " nt", " sc1", " sc0 sc1", " sc1 nt"][OPT.pubsc]
        if loc: a(f"{l1}:")
        for k in range(nfr):
            if k == 4: a(f"s_add_u32 s{sA}, s{sA}, 4096")
            a(f"buffer_store_dwordx4 {V(XB+4*k,4)}, v1, {S(SRD_WS)}, s{sA} offen offset:{1024*(k%4)}{sc}")
        if not loc: a(f"s_branch {l2}")
    a(f"{l2}:")
def publish_flag(a, br):
    sF=77
    f1_addr(a, sF, br)
    a(f"s_lshl_b32 s76, s{sDQ}, 2\ns_add_u32 s76, s76, s{sF}")
    l1, l2 = a.lab("L_FLGL"), a.lab("L_FLGD")
    a(f"s_waitcnt vmcnt(0)\nv_mov_b32 v2, s{sNONCE}\ns_mov_b64 exec, 1\ns_cmp_eq_u32 s{sLOC}, 1\ns_cbranch_scc1 {l1}")
    a(f"buffer_store_dword v2, off, {S(SRD_WS)}, s76 sc1\ns_branch {l2}\n{l1}:\nbuffer_store_dword v2, off, {S(SRD_WS)}, s76\n{l2}:\ns_mov_b64 exec, -1")

def read_loc(a):
    a(f"v_mov_b32 v12, {L_FLG}\nds_read_b32 v2, v12")
def fin_loc(a):
    a(f"v_readfirstlane_b32 s{sLOC}, v2")
def epi_G(a):
    a("s_barrier")
    ts(a,4)
    read_loc(a)
    a(f"v_and_b32 v12, 31, v0\ns_lshl_b32 s{sT}, s{sTG}, 5\nv_add_u32 v13, s{sT}, v12\nv_lshlrev_b32 v13, 4, v13\nv_add_u32 v13, {L_TT}, v13")
    a(f"v_mov_b32 v14, {L_TZ}\nv_cmp_gt_u32 vcc, 32, v0\nv_cndmask_b32 v13, v14, v13, vcc")
    a(f"ds_read_b128 {V(FA,4)}, v13")
    a(f"s_mul_i32 s{sT}, s{sCH}, 96\nv_add_u32 v12, s{sT}, v12\nv_lshlrev_b32 v12, 4, v12\nv_add_u32 v12, {L_WT}, v12")
    for st in range(3): a(f"ds_read_b128 {V(FA+4+4*st,4)}, v12 offset:{512*st}")
    a("s_waitcnt lgkmcnt(0)")
    fin_loc(a)
    for st in range(3): a(p1_mfma(True, st, FA))
    for st in range(3):
        for i in range(16): a(f"v_max_f32 v{ACC1+16*st+i}, 0, v{ACC1+16*st+i}")
        for i in range(0, 16, 2): a(f"v_pk_mul_f32 {V(ACC1+16*st+i,2)}, {V(ACC1+16*st+i,2)}, {V(ACC1+16*st+i,2)}")
        for i in range(0, 16, 2): a(f"v_cvt_pk_bf16_f32 v{XB+8*st+i//2}, v{ACC1+16*st+i}, v{ACC1+16*st+i+1}")
    publish_frags(a, 1, 6)

RS=FB
QP="quad_perm:[1,0,3,2] row_mask:0xf bank_mask:0xf"
def epi_S(a, NS, tag):
    a("s_barrier")
    ts(a,4)
    read_loc(a)
    pi_lane(a, 12, 13)
    a(f"s_lshl_b32 s{sT}, s{sTG}, 5\nv_add_u32 v13, s{sT}, v12\nv_lshlrev_b32 v13, 4, v13\nv_add_u32 v13, {L_TT}, v13")
    a(f"v_mov_b32 v14, {L_TZ}\nv_cmp_gt_u32 vcc, 32, v0\nv_cndmask_b32 v13, v14, v13, vcc")
    a(f"ds_read_b128 {V(FA,4)}, v13")
    a(f"v_and_b32 v12, 31, v0\ns_mul_i32 s{sT}, s{sCH}, 96\nv_add_u32 v11, s{sT}, v12\nv_lshlrev_b32 v12, 4, v11\nv_add_u32 v12, {L_WT}, v12")
    for st in range(NS): a(f"ds_read_b128 {V(FA+4+4*st,4)}, v12 offset:{512*st}")
    a(f"v_lshlrev_b32 v14, 4, v11\nv_add_u32 v14, {L_KC}, v14")
    for st in range(NS): a(f"ds_read_b128 {V(KC+4*st,4)}, v14 offset:{512*st}")
    a(f"v_lshrrev_b32 v13, 5, v0\nv_lshlrev_b32 v13, 6, v13\ns_lshl_b32 s{sT}, s{sTG}, 7\ns_add_u32 s{sT}, s{sT}, {L_RS}\nv_add_u32 v13, s{sT}, v13")
    for q in range(4): a(f"ds_read_b128 {V(RS+4*q,4)}, v13 offset:{16*q}")
    a("s_waitcnt lgkmcnt(4)")
    fin_loc(a)
    for st in range(NS): a(p1_mfma(False, st, FA))
    a("s_waitcnt lgkmcnt(0)")
    A = lambda st, r: ACC1+16*st+r
    for st in range(NS):
        for r in range(0, 16, 2): a(f"v_pk_mul_f32 {V(A(st,r),2)}, {V(A(st,r),2)}, {V(RS+r,2)}")
    for r in range(16):
        for st in range(NS): a(f"v_mul_f32_dpp v{FA+st}, v{A(st,r)}, v{KC+4*st+3} {QP}")
        for st in range(NS): a(f"v_fma_f32 v{A(st,r)}, v{A(st,r)}, v{KC+4*st+2}, v{FA+st}")
    E0, E1 = FA+4, FA+8
    cur = [A(st,0) for st in range(NS)]
    for r in range(1, 16):
        nx = [(E0 if r & 1 else E1)+st for st in range(NS)]
        for st in range(NS): a(f"v_fma_f32 v{nx[st]}, v{cur[st]}, v{KC+4*st}, v{A(st,r)}")
        for st in range(NS): a(f"v_fmac_f32_dpp v{nx[st]}, v{cur[st]}, v{KC+4*st+1} {QP}")
        cur = nx
    a(f"v_lshrrev_b32 v13, 5, v0\nv_mul_u32_u24 v13, 640, v13\nv_lshl_add_u32 v13, v11, 2, v13\ns_mul_i32 s{sT}, s{sTG}, 1280\ns_add_u32 s{sT}, s{sT}, {L_ESEG}\nv_add_u32 v13, s{sT}, v13")
    for st in range(NS): a(f"ds_write_b32 v13, v{cur[st]} offset:{128*st}")
    a("s_waitcnt lgkmcnt(0)")
    ts(a,10)
    a("s_barrier")
    a(f"s_lshl_b32 s{sT}, s{sW}, 11\ns_add_u32 s{sT}, s{sT}, {L_TR}")
    a("v_and_b32 v12, 31, v0\nv_bfe_u32 v14, v0, 2, 2\nv_lshrrev_b32 v15, 5, v0\nv_lshlrev_b32 v15, 1, v15\nv_xor_b32 v14, v14, v15")
    a(f"v_lshlrev_b32 v12, 6, v12\nv_lshl_add_u32 v8, v14, 4, v12\nv_add_u32 v8, s{sT}, v8\nv_xor_b32 v9, 16, v8")
    a("v_bfe_u32 v12, v0, 2, 2\nv_lshrrev_b32 v13, 5, v0\nv_lshl_add_u32 v12, v13, 3, v12\nv_lshlrev_b32 v12, 6, v12")
    a("v_bfe_u32 v14, v0, 4, 1\nv_bfe_u32 v15, v0, 1, 1\nv_lshl_add_u32 v14, v14, 1, v15\nv_lshlrev_b32 v13, 1, v13\nv_xor_b32 v14, v14, v13")
    a(f"v_and_b32 v15, 1, v0\nv_lshl_add_u32 v12, v15, 3, v12\nv_add_u32 v12, s{sT}, v12")
    a("v_lshl_add_u32 v10, v14, 4, v12\nv_xor_b32 v14, 1, v14\nv_lshl_add_u32 v7, v14, 4, v12\nv_add_u32 v7, 256, v7")
    a(f"v_lshrrev_b32 v13, 5, v0\nv_mul_u32_u24 v13, 640, v13\nv_lshl_add_u32 v13, v11, 2, v13\ns_mul_i32 s{sT}, s{sTG}, 1280\ns_add_u32 s{sT}, s{sT}, {L_ESEG}\nv_add_u32 v13, s{sT}, v13")
    if OPT.warmB:
        a(f"s_mov_b32 s75, 0\ns_mov_b64 exec, 0\ns_branch L_WB_{tag}\nL_WBB_{tag}:\ns_mov_b64 exec, -1")
    a("s_barrier")
    ts(a,11)
    if OPT.warmB: a(f"L_WB_{tag}:")
    for st in range(NS): a(f"ds_read_b32 v{FA+st}, v13 offset:{128*st}")
    a("s_waitcnt lgkmcnt(0)")
    for r in range(16):
        prev = [FA+st if r == 0 else A(st, r-1) for st in range(NS)]
        for st in range(NS): a(f"v_fmac_f32 v{A(st,r)}, v{prev[st]}, v{KC+4*st}")
        for st in range(NS): a(f"v_fmac_f32_dpp v{A(st,r)}, v{prev[st]}, v{KC+4*st+1} {QP}")
    for st in range(NS):
        for r in range(0, 16, 2): a(f"v_cvt_pk_bf16_f32 v{YB+r//2}, v{A(st,r)}, v{A(st,r+1)}")
        a(f"ds_write_b128 v8, {V(YB,4)}\nds_write_b128 v9, {V(YB+4,4)}")
        for kq in range(2):
            a(f"ds_read_b64_tr_b16 {V(XB+8*st+4*kq,2)}, v10 offset:{1024*kq}")
            a(f"ds_read_b64_tr_b16 {V(XB+8*st+4*kq+2,2)}, v7 offset:{1024*kq}")
    a("s_waitcnt lgkmcnt(0)")
    if OPT.warmB:
        a(f"s_cmp_eq_u32 s75, 0\ns_mov_b32 s75, 1\ns_cbranch_scc1 L_WBB_{tag}")
    publish_frags(a, 0, 2*NS)
```

```python
from gp_common import *
from gp_stage1 import lam_issue, lam_finish
sLW=sTG
sSLOT=70; sXO=71; sWO=72; sT=73; sIT=74; sT2=75; sEX=77
BOUND=1<<16
def adv_slot(a, reg):
    a(f"s_add_u32 s{reg}, s{reg}, {SLOT}\ns_cmp_eq_u32 s{reg}, {3*SLOT}\ns_cselect_b32 s{reg}, 0, s{reg}")
def issue1(a, G):
    a(f"s_lshl_b32 s{sT}, s{sLW}, 10\ns_add_u32 m0, s{sSLOT}, s{sT}\ns_mov_b32 s{sT2}, s{sXO}")
    for n in range(4):
        if n: a(f"s_add_u32 m0, m0, 4096\ns_add_u32 s{sT2}, s{sT2}, 40960")
        a(f"buffer_load_dwordx4 v1, {S(SRD_X)}, s{sT2} offen lds")
    if G:
        a(f"s_mul_i32 s{sT}, s{sLW}, 6144\ns_add_u32 s{sT}, s{sT}, 16384\ns_add_u32 m0, s{sSLOT}, s{sT}\ns_mov_b32 s{sT2}, s{sWO}")
        for n in range(6):
            if n: a("s_add_u32 m0, m0, 1024")
            if n == 3: a(f"s_add_u32 s{sT2}, s{sT2}, {8*3072}")
            a("s_nop 0")
            a(f"buffer_load_dwordx4 v{2+n%3}, {S(SRD_A)}, s{sT2} offen lds")
        a(f"s_add_u32 s{sWO}, s{sWO}, {64*3072}")
    else:
        a(f"s_lshl_b32 s{sT}, s{sLW}, 10\ns_add_u32 s{sT}, s{sT}, 16384\ns_add_u32 m0, s{sSLOT}, s{sT}\ns_mov_b32 s{sT2}, s{sWO}")
        for n in range(5):
            if n: a(f"s_add_u32 m0, m0, 4096\ns_add_u32 s{sT2}, s{sT2}, 20480")
            a(f"buffer_load_dwordx4 v1, {S(SRD_A)}, s{sT2} offen lds")
        a(f"s_add_u32 s{sWO}, s{sWO}, 128")
    a(f"s_add_u32 s{sXO}, s{sXO}, 128")
    adv_slot(a, sSLOT)

def issue2(a, G, j, uid):
    i = j >> 1; hs = j & 1
    a(f"s_add_u32 s{sT}, s{sDQ}, {i}\ns_and_b32 s{sT}, s{sT}, 3")
    slot = P2SLOT[G][j % 5]
    if G:
        a(f"s_lshl_b32 s{sT2}, s{sKK}, 2\ns_add_u32 s{sT}, s{sT}, s{sT2}\ns_mul_i32 s{sT}, s{sT}, {192*1280}\ns_mul_i32 s{sT2}, s{sDQ}, 320\ns_add_u32 s{sT}, s{sT}, s{sT2}")
        if hs: a(f"s_add_u32 s{sT}, s{sT}, {48*1280}")
        a(f"s_lshl_b32 s{sT2}, s{sLW}, 10\ns_add_u32 m0, s{sT2}, {slot}")
        for n in range(8):
            if n: a("s_add_u32 m0, m0, 4096")
            if n == 7: a(f"s_cmp_ge_u32 s{sLW}, 2\ns_cbranch_scc1 L_i2skip_{uid}")
            a("s_nop 0")
            a(f"buffer_load_dwordx4 v{5+n}, {S(SRD_B)}, s{sT} offen{' nt' if OPT.wnt&1 else ''} lds")
        a(f"L_i2skip_{uid}:")
    else:
        a(f"s_lshl_b32 s{sT2}, s{sKK}, 2\ns_add_u32 s{sT2}, s{sT2}, s{sDQ}\ns_lshl_b32 s{sT2}, s{sT2}, 2\ns_add_u32 s{sT}, s{sT}, s{sT2}")
        a(f"s_lshl_b32 s{sT}, s{sT}, 1\ns_add_u32 s{sT}, s{sT}, {hs}\ns_mul_i32 s{sT}, s{sT}, 25600\ns_add_u32 s{sT}, s{sT}, {WS_CREP}")
        a(f"s_lshl_b32 s{sT2}, s{sLW}, 10\ns_add_u32 s{sT}, s{sT}, s{sT2}\ns_add_u32 m0, s{sT2}, {slot}")
        for n in range(7):
            if n: a(f"s_add_u32 m0, m0, 4096\ns_add_u32 s{sT}, s{sT}, 4096")
            if n == 6: a(f"s_cmp_ge_u32 s{sLW}, 1\ns_cbranch_scc1 L_i2skip_{uid}")
            a("s_nop 0")
            a(f"buffer_load_dwordx4 v5, {S(SRD_WS)}, s{sT} offen sc1{' nt' if OPT.wnt&2 else ''} lds")
        a(f"L_i2skip_{uid}:")

def pack_hi_lo(a, x, hi, lo, t):
    a(f"v_cvt_pk_bf16_f32 v{hi}, v{x}, v{x}\nv_lshlrev_b32 v{t}, 16, v{hi}\nv_sub_f32 v{t}, v{x}, v{t}\nv_cvt_pk_bf16_f32 v{lo}, v{t}, v{t}")

def loader(a, G, stop=None):
    p = "G" if G else "S"
    PROF.inld = True
    n1 = 10 if G else 9
    sCNT = 76
    a(f"L_LOADER_{p}:")
    ts(a,0)
    a(f"buffer_load_dword v40, off, {S(SRD_WS)}, 0 sc1")
    a(f"s_cmp_lg_u32 s{sLW}, 3\ns_cbranch_scc1 L_LD{p}_e0")
    a(f"v_lshlrev_b32 v13, 4, v0\ns_mul_i32 s{sT}, s{sDQ}, 320\ns_mov_b32 exec_lo, 0xfffff\ns_mov_b32 exec_hi, 0")
    for n, ptr in enumerate((pDSK, pB2)):
        srd(a, SRD_C, ptr, 1280)
        a(f"s_mov_b32 m0, {L_DB+320*n}\ns_nop 0\nbuffer_load_dwordx4 v13, {S(SRD_C)}, s{sT} offen lds")
    a("s_mov_b64 exec, -1")
    if not G:
        a(f"s_branch L_LD{p}_e1")
    a(f"L_LD{p}_e0:")
    if not G:
        a(f"s_lshl_b32 s{sT}, s{sLW}, 6\nv_add_u32 v42, s{sT}, v0\nv_min_u32 v42, 159, v42")
        lam_issue(a)
        a(f"L_LD{p}_e1:")
    a(f"s_and_b32 s{sT}, s{sLW}, 1\ns_lshl_b32 s{sT}, s{sT}, 2")
    a(f"v_lshrrev_b32 v2, 4, v0\nv_add_u32 v2, s{sT}, v2\nv_and_b32 v2, 7, v2\nv_and_b32 v3, 7, v0\nv_xor_b32 v2, v2, v3\nv_lshlrev_b32 v2, 4, v2")
    a("v_lshrrev_b32 v3, 3, v0\nv_mul_u32_u24 v3, 1280, v3\nv_add_u32 v1, v2, v3")
    a(f"s_lshl_b32 s{sXO}, s{sR}, 7\ns_lshl_b32 s{sT}, s{sLW}, 3\ns_add_u32 s{sXO}, s{sXO}, s{sT}\ns_mul_i32 s{sXO}, s{sXO}, 1280")
    wst = 64*3072 if G else 128
    if OPT.rot == 0: a(f"s_mov_b32 s{sCNT}, 0")
    else:
        mul = {1: 1, 2: 3}[OPT.rot]
        a(f"s_and_b32 s{sCNT}, s{sR}, 3\ns_mul_i32 s{sCNT}, s{sCNT}, {mul}\ns_add_u32 s{sCNT}, s{sCNT}, s{sCG}")
        a(f"s_cmp_ge_u32 s{sCNT}, 10\ns_cselect_b32 s{sT}, 10, 0\ns_sub_u32 s{sCNT}, s{sCNT}, s{sT}")
    a(f"s_lshl_b32 s{sT}, s{sCNT}, 7\ns_add_u32 s{sXO}, s{sXO}, s{sT}")
    if G:
        srd(a, SRD_A, pW1, SZ_W1)
        a(f"s_lshl_b32 s{sWO}, s{sLW}, 4\ns_mul_i32 s{sWO}, s{sWO}, 3072\ns_mul_i32 s{sT}, s{sCG}, 384\ns_add_u32 s{sWO}, s{sWO}, s{sT}")
        for ty in range(3):
            a(f"v_lshlrev_b32 v13, 4, v0\nv_add_u32 v13, {1024*ty}, v13\nv_mul_u32_u24 v14, 43691, v13\nv_lshrrev_b32 v14, 24, v14")
            a("v_mul_u32_u24 v15, 384, v14\nv_sub_u32 v15, v13, v15")
            a("v_lshrrev_b32 v16, 1, v14\nv_and_b32 v16, 1, v16\nv_lshlrev_b32 v16, 6, v16\nv_xor_b32 v15, v15, v16")
            a(f"v_mul_u32_u24 v14, 3072, v14\nv_add_u32 v{2+ty}, v14, v15")
    else:
        a(f"s_and_b32 s{sT}, s{sLW}, 1\ns_cmp_eq_u32 s{sT}, 1\ns_cselect_b64 s[{SRD_A}:{SRD_A+1}], s[{pBIM}:{pBIM+1}], s[{pBRE}:{pBRE+1}]")
        a(f"s_mov_b32 s{SRD_A+2}, {SZ_BC}\ns_mov_b32 s{SRD_A+3}, 0x20000")
        a(f"s_mul_i32 s{sWO}, s{sCG}, 80\ns_lshr_b32 s{sT}, s{sLW}, 1\ns_lshl_b32 s{sT}, s{sT}, 3\ns_add_u32 s{sWO}, s{sWO}, s{sT}\ns_mul_i32 s{sWO}, s{sWO}, 1280")
    a(f"s_mul_i32 s{sT}, s{sCNT}, {wst}\ns_add_u32 s{sWO}, s{sWO}, s{sT}")
    def iss():
        issue1(a, G)
        lb = a.lab("L_WRAP")
        a(f"s_add_u32 s{sCNT}, s{sCNT}, 1\ns_cmp_lg_u32 s{sCNT}, 10\ns_cbranch_scc1 {lb}")
        a(f"s_sub_u32 s{sXO}, s{sXO}, 1280\ns_sub_u32 s{sWO}, s{sWO}, {10*wst}\ns_mov_b32 s{sCNT}, 0\n{lb}:")
    a(f"s_mov_b32 s{sSLOT}, {2*SLOT}")
    if G: ts(a,7)
    early = OPT.b0early & (1 if G else 2)
    iss()
    if not early: iss()
    if G: ts(a,8)
    if G:
        srd(a, SRD_B, pW2, SZ_W2)
        for n in range(8):
            a(f"s_lshl_b32 s{sT}, s{sLW}, 10\ns_add_u32 s{sT}, s{sT}, {4096*n}")
            a(f"v_lshl_add_u32 v13, v0, 4, s{sT}\nv_cmp_le_u32 vcc, 15360, v13\nv_cndmask_b32 v14, 0, 1, vcc")
            a("v_mul_u32_u24 v15, 15360, v14\nv_sub_u32 v13, v13, v15\nv_mul_u32_u24 v15, 52429, v13\nv_lshrrev_b32 v15, 24, v15")
            a("v_mul_u32_u24 v16, 320, v15\nv_sub_u32 v13, v13, v16\nv_mad_u32_u24 v15, v14, 48, v15\nv_mad_u32_u24 v15, v14, 48, v15")
            a(f"v_mul_u32_u24 v15, 1280, v15\nv_add_u32 v{5+n}, v15, v13")
    else:
        a("v_lshlrev_b32 v5, 4, v0")
    a(f"v_mov_b32 v16, 0\nv_mov_b32 v17, 0\nv_mov_b32 v18, 0\nv_mov_b32 v19, 0\nv_mov_b32 v13, {L_TZ}\nds_write_b128 v13, v[16:19]")
    NC = 192 if G else 160
    a(f"s_cmp_eq_u32 s{sLW}, 3\ns_cbranch_scc1 L_LD{p}_ga3")
    a(f"s_lshl_b32 s{sT}, s{sLW}, 6\nv_add_u32 v42, s{sT}, v0\nv_min_u32 v42, {NC-1}, v42")
    if G:
        a(f"v_lshlrev_b32 v41, 3, v42\ns_mul_i32 s78, s{sCG}, 1536\ns_add_u32 s78, s78, {WS_CSG}")
        a(f"s_mul_i32 s{sT}, s{sCG}, 192\nv_add_u32 v43, s{sT}, v42\nv_lshlrev_b32 v43, 1, v43")
    else:
        a("v_and_b32 v13, 1, v42\nv_mul_u32_u24 v13, 640, v13\nv_lshrrev_b32 v14, 5, v42\nv_lshl_add_u32 v13, v14, 4, v13")
        a(f"v_and_b32 v14, 31, v42\nv_lshrrev_b32 v14, 1, v14\nv_add_u32 v13, v13, v14\ns_mul_i32 s{sT}, s{sCG}, 80\nv_add_u32 v13, s{sT}, v13\nv_lshlrev_b32 v41, 3, v13")
        a(f"s_mov_b32 s78, {WS_CSS}\nv_mov_b32 v43, 0")
    a(f"s_branch L_LD{p}_ga4")
    a(f"L_LD{p}_ga3:")
    a(f"v_lshlrev_b32 v41, 4, v0\ns_lshl_b32 s78, s{sR}, 11\ns_add_u32 s78, s78, {WS_STATS}\nv_mov_b32 v42, v0")
    a(f"s_lshr_b32 s{sT}, s2, 3\ns_and_b32 s{sT}, s{sT}, 24\ns_lshl_b32 s{sT}, s{sT}, 3\ns_and_b32 s{sT2}, s2, 7\ns_add_u32 s{sT}, s{sT}, s{sT2}")
    a(f"v_and_b32 v43, 7, v0\nv_lshl_add_u32 v43, v43, 3, s{sT}\nv_lshlrev_b32 v43, 3, v43\nv_add_u32 v43, {WS_XCC}, v43")
    a(f"L_LD{p}_ga4:")
    a(f"s_mov_b32 s{sIT}, 0")
    a(f"L_LD{p}_LOOP:")
    a(f"s_waitcnt vmcnt({n1}) lgkmcnt(0)")
    a(f"s_cmp_lg_u32 s{sIT}, 0\ns_cbranch_scc1 L_LD{p}_n0")
    if early: a("s_waitcnt vmcnt(0)")
    a(f"v_readfirstlane_b32 s{sNONCE}, v40\ns_mul_i32 s{sNONCE}, s{sNONCE}, 1664525\ns_add_u32 s{sNONCE}, s{sNONCE}, 1013904223")
    ts(a,1)
    a(f"L_LD{p}_n0:")
    a("s_barrier")
    if PROF.on and PROF.mode==0:
        a(f"s_cmp_lg_u32 s{sIT}, 3\ns_cbranch_scc1 L_LD{p}_ts3")
        ts(a,14)
        a(f"L_LD{p}_ts3:")
    if PROF.on and PROF.mode==1:
        for k in range(7):
            a(f"s_cmp_lg_u32 s{sIT}, {k}\ns_cbranch_scc1 L_LD{p}_tsx{k}")
            ts(a,7+k,True)
            a(f"L_LD{p}_tsx{k}:")
    a(f"s_cmp_eq_u32 s{sIT}, 7\ns_cbranch_scc1 L_LD{p}_tail")
    if early:
        a(f"s_cmp_lg_u32 s{sIT}, 0\ns_cbranch_scc1 L_LD{p}_e1x")
        iss()
        a(f"L_LD{p}_e1x:")
    if not OPT.noload: iss()
    if not G:
        a(f"s_cmp_lg_u32 s{sIT}, 0\ns_cbranch_scc1 L_LD{p}_nl\ns_cmp_eq_u32 s{sLW}, 3\ns_cbranch_scc1 L_LD{p}_nl")
        lam_finish(a)
        a(f"L_LD{p}_nl:")
    a(f"s_add_u32 s{sIT}, s{sIT}, 1\ns_branch L_LD{p}_LOOP")
    a(f"L_LD{p}_tail:")
    ts(a,2)
    iss()
    ngA = 17 if G else 1
    ng3 = 3
    def gathers(is3):
        if is3:
            a(f"buffer_load_dwordx4 v[44:47], v41, {S(SRD_WS)}, s78 offen sc1\nbuffer_load_dwordx4 v[48:51], v41, {S(SRD_WS)}, s78 offen offset:1024 sc1")
            a(f"buffer_load_dwordx2 v[52:53], v43, {S(SRD_WS)}, 0 offen sc1")
        elif G:
            a("s_mov_b32 s79, s78")
            for r in range(16):
                a(f"buffer_load_dwordx2 v[{44+2*r}:{45+2*r}], v41, {S(SRD_WS)}, s79 offen sc1")
                if r < 15: a("s_add_u32 s79, s79, 12288")
            a(f"global_load_ushort v76, v43, s[{pB1}:{pB1+1}]")
        else:
            a(f"buffer_load_dwordx2 v[44:45], v41, {S(SRD_WS)}, s78 offen sc1")
    def check(is3):
        n = f"s{sNONCE}"
        if is3:
            a(f"v_xor_b32 v60, {n}, v45\nv_xor_b32 v61, {n}, v47\nv_or_b32 v60, v60, v61\nv_xor_b32 v61, {n}, v49\nv_xor_b32 v62, {n}, v51\nv_or3_b32 v60, v60, v61, v62\nv_xor_b32 v61, {n}, v53\nv_or_b32 v60, v60, v61")
        elif G:
            a(f"v_xor_b32 v78, {n}, v45")
            for r in range(1, 16): a(f"v_xor_b32 v79, {n}, v{45+2*r}\nv_or_b32 v78, v78, v79")
            a("v_mov_b32 v77, v78")
        else:
            a(f"v_xor_b32 v60, {n}, v45")
        a(f"v_cmp_ne_u32 vcc, 0, v{77 if (G and not is3) else 60}")
    nwmin = 7 if G else 6
    for is3 in (True, False):
        q = "3" if is3 else "A"
        ng = ng3 if is3 else ngA
        if is3: a(f"s_cmp_lg_u32 s{sLW}, 3\ns_cbranch_scc1 L_LD{p}_tA")
        else: a(f"L_LD{p}_tA:")
        gathers(is3)
        a(f"s_waitcnt vmcnt({n1+ng})")
        ts(a,4)
        a("s_barrier")
        if G:
            issue2(a, G, 0, f"{p}0{q}"); issue2(a, G, 1, f"{p}1{q}")
            a(f"s_waitcnt vmcnt({ng+2*nwmin})")
        else:
            a(f"s_waitcnt vmcnt({ng})")
        ts(a,5)
        a("s_barrier")
        if G:
            issue2(a, G, 2, f"{p}2{q}")
            a(f"s_waitcnt vmcnt({3*nwmin})")
        else:
            a("s_waitcnt vmcnt(0)")
        a(f"s_mov_b32 s{sIT}, {BOUND}")
        a(f"L_LD{p}_chk{q}:")
        check(is3)
        a(f"s_cbranch_vccz L_LD{p}_ok{q}")
        a(f"s_sub_u32 s{sIT}, s{sIT}, 1\ns_cmp_eq_u32 s{sIT}, 0\ns_cbranch_scc1 L_LD{p}_ok{q}")
        a("s_sleep 8")
        gathers(is3)
        a(f"s_waitcnt vmcnt(0)\ns_branch L_LD{p}_chk{q}")
        a(f"L_LD{p}_ok{q}:")
        ts(a,3)
        if is3:
            for t in range(2):
                m, rs = 44+4*t, 46+4*t
                a(f"v_sub_f32 v60, 0, v{m}")
                pack_hi_lo(a, 60, 61, 62, 63)
                a(f"v_rcp_f32 v64, v{rs}")
                pack_hi_lo(a, 64, 65, 66, 63)
                a("s_mov_b32 s76, 0x05040100")
                a("v_perm_b32 v68, v62, v61, s76\nv_perm_b32 v69, v65, v61, s76\nv_and_b32 v70, 0xffff, v66\nv_mov_b32 v71, 0")
                a(f"v_lshlrev_b32 v13, 4, v0\nv_add_u32 v13, {L_TT+1024*t}, v13\nds_write_b128 v13, v[68:71]")
                a(f"v_mov_b32 v72, v{m}\nv_mov_b32 v73, v{rs}\nv_lshlrev_b32 v13, 3, v0\nv_add_u32 v13, {L_ST+512*t}, v13\nds_write_b64 v13, v[72:73]")
                a(f"v_lshlrev_b32 v13, 2, v0\nv_add_u32 v13, {L_RS+256*t}, v13\nds_write_b32 v13, v73")
            a(f"s_getreg_b32 s{sT}, hwreg(HW_REG_XCC_ID, 0, 4)\nv_cmp_ne_u32 vcc, s{sT}, v52\ns_cmp_eq_u64 vcc, 0\ns_cselect_b32 s{sT}, {1 if OPT.local else 0}, 0")
            a(f"v_mov_b32 v14, s{sT}\nv_mov_b32 v13, {L_FLG}\nds_write_b32 v13, v14")
            a(f"s_branch L_LD{p}_tdone")
        else:
            if G:
                for r in range(1, 16): a(f"v_add_f32 v44, v44, v{44+2*r}")
            pack_hi_lo(a, 44, 45, 46, 47)
            a("s_mov_b32 s76, 0x05040100")
            a("v_perm_b32 v48, v45, v45, s76")
            if G:
                a("v_perm_b32 v49, v76, v46, s76\nv_and_b32 v50, 0xffff, v76")
            else:
                a("v_and_b32 v49, 0xffff, v46\nv_mov_b32 v50, 0")
            a(f"v_mov_b32 v51, 0\nv_lshlrev_b32 v13, 4, v42\nv_add_u32 v13, {L_WT}, v13\nds_write_b128 v13, v[48:51]")
    a(f"L_LD{p}_tdone:")
    a("s_waitcnt lgkmcnt(0)")
    ts(a,6)
    a("s_barrier")
    if stop == "p1": bump(a, p); a("s_waitcnt vmcnt(0)\ns_endpgm"); return
    if not G:
        e_exchange(a)
        for j in range(4): issue2(a, G, j, f"{p}{j}")
    else:
        for j in (3, 4): issue2(a, G, j, f"{p}{j}")
    if stop == "epi": bump(a, p); a("s_waitcnt vmcnt(0)\ns_endpgm"); return
    nw = nwmin
    issued = 5 if G else 4
    for j in range(8):
        newer = issued - 1 - j
        a(f"s_waitcnt vmcnt({newer*nw})")
        if j in (0,1,4,7): ts(a,{0:9,1:10,4:11,7:12}[j])
        a("s_barrier")
        if issued <= 7 and issued <= j+4:
            issue2(a, G, issued, f"{p}{issued}"); issued += 1
    bump(a, p)
    ts(a,13)
    endpgm(a)

def bump(a, p):
    a(f"s_cmp_lg_u32 s2, 0\ns_cbranch_scc1 L_LD{p}_nb\ns_cmp_lg_u32 s{sLW}, 0\ns_cbranch_scc1 L_LD{p}_nb")
    a(f"v_mov_b32 v13, s{sNONCE}\ns_mov_b64 exec, 1\nbuffer_store_dword v13, off, {S(SRD_WS)}, 0 sc1\ns_mov_b64 exec, -1")
    a(f"L_LD{p}_nb:")

def e_exchange(a):
    sPASS=76
    a(f"s_cmp_lg_u32 s{sLW}, 3\ns_cbranch_scc1 L_EX_work")
    a("s_barrier")
    a(f"s_mov_b32 s{sIT}, {BOUND}\ns_mov_b32 s79, {WS_F0}\nv_lshlrev_b32 v41, 4, v0")
    a("L_EX_f0:")
    a(f"buffer_load_dwordx4 v[56:59], v41, {S(SRD_WS)}, s79 offen sc1\ns_waitcnt vmcnt(0)")
    a(f"v_xor_b32 v60, s{sNONCE}, v56")
    for r in range(1, 4): a(f"v_xor_b32 v61, s{sNONCE}, v{56+r}\nv_or_b32 v60, v60, v61")
    a(f"v_cmp_ne_u32 vcc, 0, v60\ns_cbranch_vccz L_EX_f0ok\ns_sleep 8\ns_sub_u32 s{sIT}, s{sIT}, 1\ns_cmp_lg_u32 s{sIT}, 0\ns_cbranch_scc1 L_EX_f0")
    a("L_EX_f0ok:")
    ts(a,8)
    if OPT.touchc:
        a(f"s_lshr_b32 s{sT}, s2, 3\ns_mul_i32 s{sT}, s{sT}, 51200\ns_add_u32 s{sT}, s{sT}, {WS_CREP}\nv_lshlrev_b32 v13, 7, v0")
        for k in range(6):
            a(f"buffer_load_dword v20, v13, {S(SRD_WS)}, s{sT} offen sc1\ns_add_u32 s{sT}, s{sT}, 8192")
        a(f"v_min_u32 v14, 15, v0\nv_lshlrev_b32 v14, 7, v14\nbuffer_load_dword v20, v14, {S(SRD_WS)}, s{sT} offen sc1")
    a("s_branch L_EX_done\nL_EX_work:")
    a(f"s_lshl_b32 s{sT}, s{sLW}, 6\nv_add_u32 v42, s{sT}, v0")
    a(f"s_cmp_lg_u32 s{sLW}, 2\ns_cbranch_scc1 L_EX_full\ns_mov_b32 exec_hi, 0\nL_EX_full:")
    a(f"v_lshlrev_b32 v13, 2, v42\nv_add_u32 v13, {L_ESEG}, v13")
    a(f"v_lshlrev_b32 v14, 3, v42\nv_mov_b32 v52, v80\nv_mov_b32 v53, v81")
    a("v_and_b32 v16, 1, v0\nv_lshlrev_b32 v16, 31, v16\nv_or_b32 v16, 0x3f800000, v16")
    a("v_mul_f32 v54, v53, v16")
    a("v_mov_b32 v58, v52\nv_mov_b32 v59, v53")
    for _ in range(3):
        a("v_mul_f32 v60, v59, v59\nv_mul_f32 v61, v58, v59\nv_fma_f32 v58, v58, v58, -v60\nv_add_f32 v59, v61, v61")
    a("v_mul_f32 v59, v59, v16")
    a(f"s_lshl_b32 s78, s{sR}, 3\ns_add_u32 s78, s78, s{sCG}\ns_mul_i32 s78, s78, 1280\ns_add_u32 s78, s78, {WS_EG}")
    W = OPT.exwarm
    for j in range(1, 16): a(f"v_mov_b32 v{62+2*j}, 0\nv_mov_b32 v{63+2*j}, s{sNONCE}")
    a("s_mov_b64 s[82:83], exec")
    if W: a(f"s_mov_b32 s{sPASS}, 0\ns_mov_b64 exec, 0\ns_branch L_EX_A\nL_EX_b1:\ns_mov_b64 exec, s[82:83]")
    a("s_barrier")
    ts(a,7)
    a("L_EX_A:")
    for s in range(8): a(f"ds_read_b32 v{44+s}, v13 offset:{640*s}")
    a("s_waitcnt lgkmcnt(0)")
    a("v_mov_b32 v56, v44")
    for s in range(1, 8):
        a(f"v_mov_b32 v57, v{44+s}\nv_fmac_f32 v57, v56, v52\nv_fmac_f32_dpp v57, v56, v54 quad_perm:[1,0,3,2] row_mask:0xf bank_mask:0xf\nv_mov_b32 v56, v57")
    a(f"v_mov_b32 v57, s{sNONCE}")
    if W: a(f"s_cmp_eq_u32 s{sPASS}, 0\ns_mov_b32 s{sPASS}, 1\ns_cbranch_scc1 L_EX_b1")
    a(f"buffer_store_dwordx2 v[56:57], v14, {S(SRD_WS)}, s78 offen sc1")
    a(f"s_mov_b32 s{sIT}, {BOUND}")
    a("L_EX_retry:")
    a(f"s_mov_b32 s{sT2}, s78")
    for j in range(1, 16):
        a(f"s_cmp_lt_u32 s{sR}, {j}\ns_cbranch_scc1 L_EX_iss")
        a(f"s_sub_u32 s{sT2}, s{sT2}, {8*1280}")
        a(f"buffer_load_dwordx2 v[{62+2*j}:{63+2*j}], v14, {S(SRD_WS)}, s{sT2} offen sc1")
    a("L_EX_iss:")
    if W: a(f"s_cmp_lg_u32 s{sPASS}, 1\ns_cbranch_scc1 L_EX_w\ns_mov_b64 exec, 0\ns_branch L_EX_H\nL_EX_w0:\ns_mov_b64 exec, s[82:83]\nL_EX_w:")
    a("s_waitcnt vmcnt(0)")
    a(f"v_xor_b32 v60, s{sNONCE}, v65")
    for j in range(2, 16):
        a(f"v_xor_b32 v61, s{sNONCE}, v{63+2*j}\nv_or_b32 v60, v60, v61")
    a("v_cmp_ne_u32 vcc, 0, v60")
    a("s_cbranch_vccz L_EX_go")
    if OPT.exsleep: a(f"s_sleep {OPT.exsleep}")
    a(f"s_sub_u32 s{sIT}, s{sIT}, 1\ns_cmp_lg_u32 s{sIT}, 0\ns_cbranch_scc1 L_EX_retry")
    a("L_EX_go:")
    ts(a,8)
    a("L_EX_H:")
    a(f"v_mov_b32 v56, v{62+30}")
    for j in range(14, 0, -1):
        g = 62+2*j
        a(f"v_fmac_f32 v{g}, v56, v58\nv_fmac_f32_dpp v{g}, v56, v59 quad_perm:[1,0,3,2] row_mask:0xf bank_mask:0xf\nv_mov_b32 v56, v{g}")
    for s in range(8):
        a(f"ds_write_b32 v13, v56 offset:{640*s}")
        if s < 7:
            a(f"v_fmac_f32 v{44+s}, v56, v52\nv_fmac_f32_dpp v{44+s}, v56, v54 quad_perm:[1,0,3,2] row_mask:0xf bank_mask:0xf\nv_mov_b32 v56, v{44+s}")
    if W: a(f"s_cmp_eq_u32 s{sPASS}, 1\ns_mov_b32 s{sPASS}, 2\ns_cbranch_scc1 L_EX_w0")
    a("s_mov_b64 exec, -1\ns_waitcnt lgkmcnt(0)")
    a("L_EX_done:")
    a("s_barrier")
```

```python
from gp_common import *
from gp_compute import MF, XB, YB, WR, ACC2, t_slot, f1_addr, publish_flag, sT, sT2
BOUND=1<<16
sTA=78; sP=79; sIT2=80
RING=6; LA=5
def tok_loads(a, br, i, buf, nfr):
    a(f"s_add_u32 s{sT}, s{sDQ}, {i}\ns_and_b32 s{sT}, s{sT}, 3\ns_lshl_b32 s{sT2}, s{sKK}, 2\ns_add_u32 s{sT}, s{sT}, s{sT2}")
    a(f"s_lshl_b32 s{sTA}, s{sR}, 3\ns_add_u32 s{sTA}, s{sTA}, s{sT}\ns_lshl_b32 s{sTA}, s{sTA}, 2\ns_add_u32 s{sTA}, s{sTA}, s{sTG}\ns_lshl_b32 s{sTA}, s{sTA}, 1\ns_add_u32 s{sTA}, s{sTA}, s{sCH}")
    a(f"s_mul_i32 s{sTA}, s{sTA}, 6144\ns_add_u32 s{sTA}, s{sTA}, {WS_T + br*16*8*8*6144}")
    for k in range(nfr):
        if k == 4: a(f"s_add_u32 s{sTA}, s{sTA}, 4096")
        a(f"buffer_load_dwordx4 {V(buf+4*k,4)}, v1, {S(SRD_WS)}, s{sTA} offen offset:{1024*(k%4)}{['',' sc1'][OPT.tsc0]}")
sSL=[None,84,85,86]
def tok_addr(a, br, i):
    d = sSL[i]
    a(f"s_add_u32 s{sT}, s{sDQ}, {i}\ns_and_b32 s{sT}, s{sT}, 3\ns_lshl_b32 s{sT2}, s{sKK}, 2\ns_add_u32 s{sT}, s{sT}, s{sT2}")
    a(f"s_lshl_b32 s{d}, s{sR}, 3\ns_add_u32 s{d}, s{d}, s{sT}\ns_lshl_b32 s{d}, s{d}, 2\ns_add_u32 s{d}, s{d}, s{sTG}\ns_lshl_b32 s{d}, s{d}, 1\ns_add_u32 s{d}, s{d}, s{sCH}")
    a(f"s_mul_i32 s{d}, s{d}, 6144\ns_add_u32 s{d}, s{d}, {WS_T + br*16*8*8*6144}\ns_add_u32 s{d+3}, s{d}, 4096")
def tok_load1(a, i, k, buf):
    d = sSL[i] + (3 if k >= 4 else 0)
    a(f"buffer_load_dwordx4 {V(buf+4*k,4)}, v1, {S(SRD_WS)}, s{d} offen offset:{1024*(k%4)}{['',' sc1',' nt',' sc1 nt'][OPT.tsc]}")
def poll_f1(a, br, tag):
    f1_addr(a, sP, br)
    a(f"s_mov_b32 s{sIT2}, {BOUND}")
    a(f"L_PF1_{tag}:")
    a(f"buffer_load_dwordx4 v[12:15], off, {S(SRD_WS)}, s{sP} sc1\ns_waitcnt vmcnt(0)")
    a(f"v_xor_b32 v12, s{sNONCE}, v12\nv_xor_b32 v13, s{sNONCE}, v13\nv_xor_b32 v14, s{sNONCE}, v14\nv_xor_b32 v15, s{sNONCE}, v15")
    a("v_or3_b32 v12, v12, v13, v14\nv_or_b32 v12, v12, v15\nv_cmp_ne_u32 vcc, 0, v12")
    a(f"s_cbranch_vccz L_PF1_{tag}_ok\ns_sub_u32 s{sIT2}, s{sIT2}, 1\ns_cmp_lg_u32 s{sIT2}, 0\ns_cbranch_scc1 L_PF1_{tag}")
    a(f"L_PF1_{tag}_ok:")

PF=XB
sXO=90
def final_addr(a, br):
    qf_expr(a, br, 81)
    a(f"s_lshl_b32 s82, s{sR}, 7\ns_lshl_b32 s83, s81, 5\ns_add_u32 s82, s82, s83")
    a("v_and_b32 v2, 31, v0\nv_add_u32 v2, s82, v2")
    a("v_lshrrev_b32 v3, 5, v0\nv_lshlrev_b32 v3, 3, v3")
    a("v_mul_u32_u24 v6, 1280, v2\nv_add_u32 v6, v6, v3")
    for sl in range(2):
        d = sXO+sl
        a(f"s_add_u32 s82, s{sW}, {8*sl}\ns_min_u32 s82, s82, 9\ns_lshr_b32 s83, s82, 1\ns_lshl_b32 s83, s83, 6\ns_and_b32 s82, s82, 1\ns_lshl_b32 s82, s82, 5\ns_add_u32 s{d}, s82, s83")
    a(f"s_mul_i32 s92, s{sDQ}, 320")
def final_xloads(a, tag):
    for sl in range(2):
        if sl: a(f"s_cmp_ge_u32 s{sW}, 2\ns_cbranch_scc1 L_FXL_{tag}")
        a(f"s_add_u32 s82, s92, s{sXO+sl}")
        for sub in range(2):
            a(f"buffer_load_dwordx2 {V(PF+4*sl+2*sub,2)}, v6, {S(SRD_X)}, s82 offen offset:{16*sub}")
    a(f"L_FXL_{tag}:")
def qf_expr(a, br, dst):
    a(f"s_add_u32 s{dst}, s{sKK}, {2*br}")

def phase2(a, G, ch, tag, flagslab=0):
    br = 1 if G else 0
    nk = 3 if (G or ch == 0) else 2
    nfr = 2*nk
    PS = 5*nk; N = 8*PS
    tb = PS - 3
    if G:
        a("v_bfe_u32 v12, v0, 2, 2\nv_lshrrev_b32 v13, 5, v0\nv_lshl_add_u32 v13, v13, 2, v12\nv_mul_u32_u24 v13, 320, v13")
        a("v_bfe_u32 v14, v0, 4, 1\nv_lshl_add_u32 v13, v14, 5, v13\nv_and_b32 v14, 3, v0\nv_lshl_add_u32 v13, v14, 3, v13")
        a(f"s_mul_i32 s{sT}, s{sCH}, 15360\nv_add_u32 v4, s{sT}, v13")
    else:
        a(f"v_lshlrev_b32 v4, 4, v0")
        if ch: a("v_add_u32 v4, 15360, v4")
    a("v_lshlrev_b32 v1, 4, v0")
    q = []
    def adr(j): return 5 + (j & 1)
    def adr(j): return 8 + (j & 1)
    def set_adr(j): a(f"v_add_u32 v{adr(j)}, {P2SLOT[G][j%5]}, v4")
    def frag_read(n):
        j, t = divmod(n, PS); kk, dt = divmod(t, 5)
        r = WR + 4*(n % RING)
        if G:
            o = kk*5120 + dt*64
            a(f"ds_read_b64_tr_b16 {V(r,2)}, v{adr(j)} offset:{o}"); q.append(n)
            a(f"ds_read_b64_tr_b16 {V(r+2,2)}, v{adr(j)} offset:{o+2560}"); q.append(n)
        else:
            a(f"ds_read_b128 {V(r,4)}, v{adr(j)} offset:{1024*t}"); q.append(n)
    def wait_frag(n):
        if n not in q: return
        last = len(q) - 1 - q[::-1].index(n)
        cnt = len(q) - 1 - last
        a(f"s_waitcnt lgkmcnt({cnt})")
        del q[:last+1]
    vm = []
    def wait_vm(lbl):
        if lbl not in vm: return
        last = len(vm) - 1 - vm[::-1].index(lbl)
        a(f"s_waitcnt vmcnt({len(vm)-1-last})")
        del vm[:last+1]
    buf = [XB, YB, XB, YB]
    set_adr(0); set_adr(1)
    ts(a,5)
    a("s_barrier")
    ts(a,6)
    rp = 0; allowed = PS
    issued = set(); polled = False; pend = []; queued = set(); cnt = 0
    def pop():
        if pend:
            ii, k = pend.pop(0)
            tok_load1(a, ii, k, buf[ii]); vm.append((ii, k)); issued.add((ii, k))
    while rp < LA: frag_read(rp); rp += 1
    for n in range(N):
        j, t = divmod(n, PS); kk, dt = divmod(t, 5)
        i = j >> 1; hs = j & 1
        if t == tb:
            assert rp == (j+1)*PS, (rp, j)
            a("s_waitcnt lgkmcnt(0)"); q.clear()
            a("s_barrier")
            allowed = min(N, (j+2)*PS)
            if j+2 <= 7: set_adr(j+2)
            while rp < min(allowed, n + LA): frag_read(rp); rp += 1
        if OPT.p2ts and t == 0 and j == 2: ts(a,1,True)
        if dt == 0:
            k = nk*hs + kk
            if i > 0:
                while OPT.p2poll and (i, k) not in issued: pop()
                wait_vm((i, k))
        if OPT.p2ts and t == 0 and j >= 2: ts(a,{2:2,3:3,4:4,5:10,6:11,7:5}[j],True)
        wait_frag(n)
        acc = V(ACC2+16*dt, 16)
        tf = V(buf[i] + 4*(nk*hs + kk), 4)
        c = "0" if (j == 0 and kk == 0) else acc
        a(f"{MF} {acc}, {V(WR+4*(n%RING),4)}, {tf}, {c}")
        while rp < min(allowed, n + 1 + LA): frag_read(rp); rp += 1
        if OPT.p2poll:
            if j == 0 and t == 4: publish_flag(a, br)
            if j == 0 and t == PS-1:
                ts(a,12)
                f1_addr(a, sP, br)
                a(f"buffer_load_dwordx4 v[12:15], off, {S(SRD_WS)}, s{sP} sc1")
                for ii in (1, 2, 3): tok_addr(a, br, ii)
            if j == 1 and t == min(OPT.p2poll, PS-1):
                a("s_waitcnt vmcnt(0)")
                a(f"s_mov_b32 s{sIT2}, {BOUND}")
                a(f"L_PF1_{tag}:")
                a(f"v_xor_b32 v12, s{sNONCE}, v12\nv_xor_b32 v13, s{sNONCE}, v13\nv_xor_b32 v14, s{sNONCE}, v14\nv_xor_b32 v15, s{sNONCE}, v15")
                a("v_or3_b32 v12, v12, v13, v14\nv_or_b32 v12, v12, v15\nv_cmp_ne_u32 vcc, 0, v12")
                a(f"s_cbranch_vccz L_PF1_{tag}_ok\ns_sub_u32 s{sIT2}, s{sIT2}, 1\ns_cmp_eq_u32 s{sIT2}, 0\ns_cbranch_scc1 L_PF1_{tag}_ok")
                a(f"buffer_load_dwordx4 v[12:15], off, {S(SRD_WS)}, s{sP} sc1\ns_waitcnt vmcnt(0)\ns_branch L_PF1_{tag}")
                a(f"L_PF1_{tag}_ok:")
                ts(a,7)
                pend += [(1, k) for k in range(nfr)]
                done = nk + (t + 1)//5
                pend += [(2, k) for k in range(done)]
                for x in pend: queued.add(x)
                for _ in range(OPT.tq0): pop()
                polled = True; cnt = 0
            elif polled:
                if dt == 4 and i + 2 <= 3:
                    k = nk*hs + kk
                    if (i+2, k) not in queued: pend.append((i+2, k)); queued.add((i+2, k))
                cnt += 1
                if cnt % OPT.tqr == 0: pop()
            if j == 1 and t == 0: final_addr(a, br)
            if t == PS-1 and j == 5: final_xloads(a, tag)
        elif t == PS-1:
            if j == flagslab: publish_flag(a, br)
            if j == 1:
                ts(a,12)
                poll_f1(a, br, tag)
                ts(a,7)
                tok_loads(a, br, 1, YB, nfr); vm += [(1, k) for k in range(nfr)]
                tok_loads(a, br, 2, XB, nfr); vm += [(2, k) for k in range(nfr)]
        if t == PS-1 and not OPT.p2poll:
            if j == 3:
                tok_loads(a, br, 3, YB, nfr); vm += [(3, k) for k in range(nfr)]
            if j == 5:
                nops = final_prefetch(a, br); vm += [("pf", k) for k in range(nops)]

def _x(): pass
XO_OWN=81920
def final(a, G, tag):
    br = 1 if G else 0
    ts(a,8)
    a(f"s_mul_i32 s{sT}, s{sW}, 10240\nv_add_u32 v4, s{sT}, v1")
    a(f"s_xor_b32 s{sT}, s{sW}, 4\ns_mul_i32 s{sT}, s{sT}, 10240\nv_add_u32 v5, s{sT}, v1")
    a(f"s_cmp_eq_u32 s{sCH}, 0\ns_cbranch_scc1 L_FX0_{tag}")
    for g in range(10): a(f"ds_write_b128 v4, {V(ACC2+4*g,4)} offset:{1024*g}")
    a("s_waitcnt lgkmcnt(0)\ns_barrier")
    for g in range(10): a(f"ds_read_b128 {V(ACC2+4*g,4)}, v5 offset:{1024*g}")
    a("s_waitcnt lgkmcnt(0)")
    for r in range(0, 40, 2): a(f"v_pk_add_f32 {V(ACC2+r,2)}, {V(ACC2+r,2)}, {V(ACC2+40+r,2)}")
    a(f"s_branch L_FX1_{tag}")
    a(f"L_FX0_{tag}:")
    for g in range(10): a(f"ds_write_b128 v4, {V(ACC2+40+4*g,4)} offset:{1024*g}")
    a("s_waitcnt lgkmcnt(0)\ns_barrier")
    for g in range(10): a(f"ds_read_b128 {V(ACC2+40+4*g,4)}, v5 offset:{1024*g}")
    a("s_waitcnt lgkmcnt(0)")
    for r in range(0, 40, 2): a(f"v_pk_add_f32 {V(ACC2+r,2)}, {V(ACC2+r,2)}, {V(ACC2+40+r,2)}")
    a(f"L_FX1_{tag}:")
    a(f"s_cmp_eq_u32 s{sTG}, s81\ns_cbranch_scc1 L_OWN_{tag}")
    a(f"s_lshl_b32 s84, s{sR}, 2\ns_add_u32 s84, s84, s{sDQ}\ns_lshl_b32 s84, s84, 2\ns_add_u32 s84, s84, s{sTG}")
    a(f"s_lshl_b32 s82, s84, 8\ns_add_u32 s82, s82, {WS_F2}")
    a(f"s_lshl_b32 s84, s84, 2\ns_add_u32 s84, s84, s81")
    a(f"s_mul_i32 s84, s84, 10\ns_mul_i32 s85, s{sCH}, 5\ns_add_u32 s84, s84, s85\ns_lshl_b32 s84, s84, 10\ns_add_u32 s84, s84, {WS_X}")
    T0 = ACC2+40
    for k in range(20): a(f"v_cvt_pk_bf16_f32 v{T0+k}, v{ACC2+2*k}, v{ACC2+2*k+1}")
    a(f"s_lshr_b32 s83, s{sTG}, 1\ns_cmp_eq_u32 s83, {br}\ns_cselect_b32 s83, s{sLOC}, 0")
    if not OPT.locx: a("s_mov_b32 s83, 0")
    a(f"s_lshr_b32 s85, s{sTG}, 1\ns_cmp_eq_u32 s85, {br}\ns_cbranch_scc1 L_FA_{tag}\ns_lshl_b32 s85, s{sKK}, 3\ns_add_u32 s82, s82, s85\ns_add_u32 s82, s82, 128\nL_FA_{tag}:")
    a(f"s_lshl_b32 s85, s{sCH}, 2\ns_add_u32 s82, s82, s85")
    a(f"s_cmp_eq_u32 s83, 1\ns_cbranch_scc1 L_SNDL_{tag}")
    for loc in (0, 1):
        sc = " sc1" if not loc else ["", " nt", " sc1", " sc0 sc1", " sc1 nt"][OPT.parsc]
        if loc: a(f"L_SNDL_{tag}:")
        for m in range(5):
            o = 1024*(m % 4)
            if m == 4: a("s_add_u32 s84, s84, 4096")
            a(f"buffer_store_dwordx4 {V(T0+4*m,4)}, v1, {S(SRD_WS)}, s84 offen offset:{o}{sc}")
        if not loc: a(f"s_branch L_SENT_{tag}")
    a(f"s_branch L_SENT_{tag}")
    a(f"L_OWN_{tag}:")
    a(f"s_mul_i32 s84, s{sCH}, 10240\ns_add_u32 s84, s84, {XO_OWN}\nv_add_u32 v4, s84, v1")
    for k in range(10): a(f"ds_write_b128 v4, {V(ACC2+4*k,4)} offset:{1024*k}")
    a(f"L_SENT_{tag}:")
    a("s_waitcnt lgkmcnt(0)\ns_barrier")
    a(f"s_cmp_eq_u32 s{sTG}, s81\ns_cbranch_scc1 L_NOFLAG_{tag}")
    a(f"s_waitcnt vmcnt(0)\nv_mov_b32 v12, s{sNONCE}\ns_mov_b64 exec, 1\ns_cmp_eq_u32 s83, 1\ns_cbranch_scc1 L_FLL_{tag}")
    a(f"buffer_store_dword v12, off, {S(SRD_WS)}, s82 sc1\ns_branch L_FLD_{tag}\nL_FLL_{tag}:\nbuffer_store_dword v12, off, {S(SRD_WS)}, s82\nL_FLD_{tag}:\ns_mov_b64 exec, -1")
    a(f"L_NOFLAG_{tag}:")
    a(f"s_lshl_b32 s84, s{sR}, 2\ns_add_u32 s84, s84, s{sDQ}\ns_lshl_b32 s84, s84, 2\ns_add_u32 s84, s84, s81")
    a(f"s_lshl_b32 s82, s84, 8\ns_add_u32 s82, s82, {WS_F2}")
    a(f"s_mul_i32 s84, s84, {4*10240}\ns_add_u32 s84, s84, {WS_X}")
    a(f"s_lshl_b32 s83, s{sW}, 10\ns_add_u32 s84, s84, s83")
    a("s_xor_b32 s85, s81, 1")
    a(f"s_mul_i32 s85, s85, 10240\ns_add_u32 s85, s85, s84")
    ob = 0 if G else 2
    a(f"s_add_u32 s86, s84, {ob*10240}")
    IN = ACC2
    OW = ACC2+40
    DB = ACC2+24
    a(f"s_lshl_b32 s83, s{sW}, 11\ns_add_u32 s83, s83, {XO_OWN}\nv_add_u32 v5, s83, v1")
    a(f"v_add_u32 v4, {L_DB}, v3")
    for sl in range(2):
        if sl: a(f"s_cmp_ge_u32 s{sW}, 2\ns_cbranch_scc1 L_FR_{tag}\nv_add_u32 v5, 16384, v5")
        a(f"v_add_u32 v7, s{sXO+sl}, v4")
        for sub in range(2):
            g = 2*sl+sub
            a(f"ds_read_b128 {V(OW+4*g,4)}, v5 offset:{1024*sub}")
            a(f"ds_read_b64 {V(DB+4*g,2)}, v7 offset:{16*sub}\nds_read_b64 {V(DB+4*g+2,2)}, v7 offset:{320+16*sub}")
    a(f"L_FR_{tag}:")
    a(f"v_and_b32 v4, 31, v0\ns_lshl_b32 s83, s81, 5\nv_add_u32 v4, s83, v4\nv_lshlrev_b32 v4, 3, v4\nv_add_u32 v4, {L_ST}, v4\nds_read_b64 v[10:11], v4")
    srd(a, SRD_O, pOUT, SZ_OUT)
    a("s_mov_b32 s94, 0x00003f80\ns_mov_b32 s95, 0x3f800000")
    if OPT.o64:
        a("v_and_b32 v3, 16, v0\nv_sub_u32 v6, v2, v3\nv_mul_u32_u24 v6, 2560, v6\nv_lshl_add_u32 v6, v3, 1, v6\nv_lshrrev_b32 v3, 5, v0\nv_lshl_add_u32 v6, v3, 4, v6")
    else:
        a("v_mul_u32_u24 v6, 2560, v2\nv_lshrrev_b32 v3, 5, v0\nv_lshl_add_u32 v6, v3, 4, v6")
    ts(a,13)
    a("v_min_u32 v12, 5, v0\nv_lshlrev_b32 v13, 2, v12\nv_add_u32 v14, 120, v13\nv_cmp_gt_u32 vcc, 2, v12\nv_cndmask_b32 v13, v14, v13, vcc")
    a(f"s_mov_b32 s{sIT2}, {BOUND}")
    a(f"L_CP_{tag}:")
    a(f"buffer_load_dword v14, v13, {S(SRD_WS)}, s82 offen sc1\ns_waitcnt vmcnt(0)\nv_cmp_ne_u32 vcc, s{sNONCE}, v14")
    a(f"s_cbranch_vccz L_FP_{tag}\ns_sleep {OPT.cpoll}\ns_sub_u32 s{sIT2}, s{sIT2}, 1\ns_cmp_lg_u32 s{sIT2}, 0\ns_cbranch_scc1 L_CP_{tag}")
    a(f"L_FP_{tag}:")
    def inbox(sl):
        if sl: a("s_add_u32 s85, s85, 8192\ns_add_u32 s86, s86, 8192")
        a(f"buffer_load_dwordx4 {V(IN+12*sl,4)}, v1, {S(SRD_WS)}, s85 offen{['',' sc1',' nt',' sc1 nt'][OPT.isc]}")
        a(f"buffer_load_dwordx4 {V(IN+12*sl+4,4)}, v1, {S(SRD_WS)}, s86 offen{['',' sc1',' nt',' sc1 nt'][OPT.isc]}")
        a(f"s_add_u32 s83, s86, 10240\nbuffer_load_dwordx4 {V(IN+12*sl+8,4)}, v1, {S(SRD_WS)}, s83 offen{['',' sc1',' nt',' sc1 nt'][OPT.isc]}")
    inbox(0)
    a(f"s_cmp_ge_u32 s{sW}, 2\ns_cbranch_scc1 L_FI_{tag}")
    inbox(1)
    a(f"L_FI_{tag}:")
    ts(a,9)
    a("s_waitcnt lgkmcnt(0)")
    a("v_mul_f32 v12, v10, v11\nv_sub_f32 v12, 0, v12\nv_mul_f32 v13, v11, v11")
    W = 40
    def group(sl, sub):
        g = 2*sl+sub
        A_, B_, C_ = IN+12*sl+2*sub, IN+12*sl+4+2*sub, IN+12*sl+8+2*sub
        U = OW+4*g ; Vv = W
        sel = ["s94", "s95"]
        for e in range(4):
            a(f"v_dot2_f32_bf16 v{U+e}, v{A_+(e>>1)}, {sel[e&1]}, v{U+e}")
        for e in range(4):
            a(f"v_dot2_f32_bf16 v{Vv+e}, v{B_+(e>>1)}, {sel[e&1]}, 0")
        for e in range(4):
            a(f"v_dot2_f32_bf16 v{Vv+e}, v{C_+(e>>1)}, {sel[e&1]}, v{Vv+e}")
        sreg, oreg = (Vv, U) if G else (U, Vv)
        X_, D_, B2 = W+4, W+8, W+12
        for (dst, src) in ((X_, PF+2*g), (D_, DB+4*g), (B2, DB+4*g+2)):
            a(f"v_lshlrev_b32 v{dst}, 16, v{src}\nv_and_b32 v{dst+1}, 0xffff0000, v{src}\nv_lshlrev_b32 v{dst+2}, 16, v{src+1}\nv_and_b32 v{dst+3}, 0xffff0000, v{src+1}")
        XN = W+16
        for e in range(4): a(f"v_fma_f32 v{XN+e}, v{X_+e}, v11, v12")
        for e in range(4): a(f"v_fmac_f32 v{sreg+e}, v{XN+e}, v{D_+e}")
        for e in range(4): a(f"v_fma_f32 v{oreg+e}, v{oreg+e}, v13, v{B2+e}")
        for e in range(4): a(f"v_mul_f32 v{XN+e}, 0xbfb8aa3b, v{oreg+e}")
        for e in range(4): a(f"v_exp_f32 v{XN+e}, v{XN+e}")
        for e in range(4): a(f"v_add_f32 v{XN+e}, 1.0, v{XN+e}")
        for e in range(4): a(f"v_rcp_f32 v{XN+e}, v{XN+e}")
        for e in range(4): a(f"v_mul_f32 v{oreg+e}, v{oreg+e}, v{XN+e}")
        O4 = W+20 + 4*(g & 1)
        for e in range(4): a(f"v_fma_f32 v{O4+e}, v{sreg+e}, v{oreg+e}, v{X_+e}")
        if sub == 0: a(f"s_add_u32 s83, s92, s{sXO+sl}\ns_lshl_b32 s83, s83, 1")
        if OPT.o64:
            if sub == 1:
                osc = ['',' sc1',' nt',' sc0 sc1',' sc1 nt'][OPT.outsc]
                a("s_add_u32 s82, s83, 40960")
                a("s_nop 1")
                for e in range(4): a(f"v_permlane16_swap_b32 v{W+20+e}, v{W+24+e}")
                a(f"buffer_store_dwordx4 {V(W+20,4)}, v6, {S(SRD_O)}, s83 offen{osc}")
                a(f"buffer_store_dwordx4 {V(W+24,4)}, v6, {S(SRD_O)}, s82 offen{osc}")
            return
        a(f"buffer_store_dwordx4 {V(O4,4)}, v6, {S(SRD_O)}, s83 offen offset:{32*sub}{['',' sc1',' nt',' sc0 sc1',' sc1 nt'][OPT.outsc]}")
    a(f"s_cmp_lt_u32 s{sW}, 2\ns_cbranch_scc1 L_F2_{tag}")
    a("s_waitcnt vmcnt(0)")
    a(f"s_branch L_F3_{tag}\nL_F2_{tag}:\ns_waitcnt vmcnt(3)\nL_F3_{tag}:")
    group(0, 0); group(0, 1)
    a(f"s_cmp_ge_u32 s{sW}, 2\ns_cbranch_scc1 L_FE_{tag}\ns_waitcnt vmcnt(2)")
    group(1, 0); group(1, 1)
    a(f"L_FE_{tag}:")
    ts(a,14)
    endpgm(a)
```

```python
from gp_common import *
ONES="0x3f803f80"
def prologue(a):
    a("s_cmp_ge_u32 s2, 256\ns_cbranch_scc1 L_END")
    a("s_load_dwordx16 s[36:51], s[0:1], 0\ns_load_dwordx16 s[52:67], s[0:1], 64\ns_load_dwordx2 s[68:69], s[0:1], 128")
    a("v_lshrrev_b32 v1, 6, v0\nv_and_b32 v0, 63, v0")
    a(f"v_readfirstlane_b32 s{sW}, v1")
    a(f"""s_and_b32 s{sBR}, s2, 1
s_lshr_b32 s70, s2, 1
s_and_b32 s70, s70, 3
s_lshr_b32 s71, s2, 3
s_lshr_b32 s72, s71, 3
s_and_b32 s{sCG}, s71, 7
s_lshl_b32 s{sR}, s70, 2
s_add_u32 s{sR}, s{sR}, s72
s_lshr_b32 s{sKK}, s{sCG}, 2
s_and_b32 s{sDQ}, s{sCG}, 3
s_and_b32 s{sTG}, s{sW}, 3
s_lshr_b32 s{sCH}, s{sW}, 2""")
    if OPT.codepf:
        a(f"s_cmp_ge_u32 s2, {OPT.codepf}\ns_cbranch_scc1 L_NOCPF")
        a(f"s_getpc_b64 s[70:71]\nL_PC:\ns_sub_u32 s70, s70, L_PC-{K}\ns_subb_u32 s71, s71, 0")
        a(f"v_lshl_add_u32 v2, s{sW}, 6, v0\nv_lshlrev_b32 v2, 7, v2\ns_mov_b32 s72, L_END-{K}\nv_min_u32 v2, s72, v2")
        a("v_mov_b32 v3, s71\nv_add_co_u32 v2, vcc, s70, v2\nv_addc_co_u32 v3, vcc, 0, v3, vcc")
        a("global_load_dword v167, v[2:3], off\nL_NOCPF:")
    a("s_waitcnt lgkmcnt(0)")
    clk_start(a)
    srd(a, SRD_WS, pWS, SZ_WS); srd(a, SRD_X, pX, SZ_X)
    a(f"s_cmp_ge_u32 s{sW}, 8\ns_cbranch_scc1 L_LOADER")

def row_load(a, vb, srdn, soff):
    a(f"buffer_load_dwordx4 {V(vb,4)}, v1, {S(srdn)}, s{soff} offen")
    a(f"buffer_load_dword v{vb+4}, v2, {S(srdn)}, s{soff} offen")
def row_sum(a, vb, dst):
    a(f"v_mov_b32 v{dst}, 0")
    for i in range(5): a(f"v_dot2_f32_bf16 v{dst}, v{vb+i}, s70, v{dst}")

def side_issue_common(a):
    a(f"buffer_load_dword v3, off, {S(SRD_WS)}, 0 sc1")
    a("v_lshlrev_b32 v1, 4, v0\nv_lshlrev_b32 v2, 2, v0\nv_add_u32 v2, 1024, v2")
    a(f"s_lshl_b32 s70, s{sBR}, 3\ns_add_u32 s70, s70, s{sCG}\ns_lshl_b32 s70, s70, 3\ns_add_u32 s70, s70, s{sW}")
    a(f"s_lshl_b32 s71, s{sR}, 7\ns_add_u32 s74, s70, s71")
    a("s_mul_i32 s71, s74, 1280")
    row_load(a, 4, SRD_X, 71)

def stats_finish(a):
    a(f"s_mov_b32 s70, {ONES}")
    row_sum(a, 4, 14)
    wave_reduce(a, [14])
    a("v_readlane_b32 s71, v14, 63")
    a("v_mov_b32 v15, 0x3acccccd\nv_mul_f32 v14, s71, v15")
    a("v_mov_b32 v15, 0")
    for i in range(5):
        a(f"v_lshlrev_b32 v16, 16, v{4+i}\nv_and_b32 v17, 0xffff0000, v{4+i}")
        a("v_sub_f32 v16, v16, v14\nv_sub_f32 v17, v17, v14\nv_fmac_f32 v15, v16, v16\nv_fmac_f32 v15, v17, v17")
    wave_reduce(a, [15])
    a("v_readlane_b32 s71, v15, 63")
    a("v_mov_b32 v15, 0x3acccccd\nv_mov_b32 v16, 0x3727c5ac\nv_fma_f32 v15, s71, v15, v16")
    a("v_rsq_f32 v15, v15")
    a(f"v_mov_b32 v16, v14\nv_mov_b32 v17, s{sNONCE}\nv_mov_b32 v18, v15\nv_mov_b32 v19, s{sNONCE}")
    a(f"s_lshl_b32 s71, s74, 4\ns_add_u32 s71, s71, {WS_STATS}")
    a("s_mov_b64 exec, 1")
    a(f"buffer_store_dwordx4 v[16:19], off, {S(SRD_WS)}, s71 sc1")
    a("s_mov_b64 exec, -1")

CR=120
def crep_issue(a):
    lb = a.lab("L_NOREP1")
    a(f"s_lshr_b32 s75, s2, 1\ns_lshl_b32 s70, s{sW}, 7\ns_add_u32 s75, s75, s70")
    a(f"s_cmp_ge_u32 s75, 200\ns_cbranch_scc1 {lb}")
    a("s_mul_i32 s76, s75, 6554\ns_lshr_b32 s76, s76, 16\ns_mul_i32 s77, s76, 10\ns_sub_u32 s77, s75, s77")
    a("s_mul_i32 s78, s76, 40960\ns_lshl_b32 s79, s77, 7\ns_add_u32 s78, s78, s79")
    srd(a, SRD_A, pCRE, SZ_BC); srd(a, SRD_B, pCIM, SZ_BC)
    a("v_lshrrev_b32 v9, 3, v0\nv_and_b32 v10, 7, v0\nv_xor_b32 v10, v10, v9\nv_lshlrev_b32 v10, 4, v10\nv_mul_u32_u24 v9, 1280, v9\nv_add_u32 v9, v9, v10")
    a(f"s_lshl_b32 s79, s{sW}, 13\ns_add_u32 m0, s79, {L_CRS}")
    for mat, sr in enumerate((SRD_A, SRD_B)):
        a("s_mov_b32 s79, s78")
        for n in range(4):
            a(f"buffer_load_dwordx4 v9, {S(sr)}, s79 offen lds\ns_add_u32 m0, m0, 1024\ns_add_u32 s79, s79, {8*1280}")
    a(f"{lb}:")
def crep_finish(a):
    lb = a.lab("L_NOREP2")
    a(f"s_cmp_ge_u32 s75, 200\ns_cbranch_scc1 {lb}")
    a("s_waitcnt vmcnt(1)")
    a(f"v_and_b32 v2, 31, v0\nv_and_b32 v3, 7, v0\nv_lshlrev_b32 v3, 4, v3\nv_lshl_add_u32 v2, v2, 7, v3\nv_lshrrev_b32 v3, 5, v0\nv_lshl_add_u32 v2, v3, 3, v2")
    a(f"s_lshl_b32 s78, s{sW}, 13\ns_add_u32 s78, s78, {L_CRS}\nv_add_u32 v2, s78, v2")
    for g in range(8):
        a(f"v_xor_b32 v3, {16*g}, v2\nds_read_b64 v[{CR+4*g}:{CR+4*g+1}], v3\nds_read_b64 v[{CR+4*g+2}:{CR+4*g+3}], v3 offset:4096")
    a("s_waitcnt lgkmcnt(0)")
    a("s_mul_i32 s78, s76, 52\ns_lshr_b32 s78, s78, 8\ns_mul_i32 s79, s78, 5\ns_sub_u32 s79, s76, s79")
    a(f"s_lshl_b32 s78, s78, 2\ns_lshl_b32 s79, s79, 10\ns_add_u32 s79, s79, {WS_CREP}")
    a("s_lshl_b32 s77, s77, 3")
    a("s_mov_b32 s84, 0x05040100\ns_mov_b32 s85, 0x07060302\nv_lshlrev_b32 v2, 4, v0")
    for g in range(8):
        a("s_mul_i32 s80, s77, 6554\ns_lshr_b32 s80, s80, 16\ns_mul_i32 s81, s80, 10\ns_sub_u32 s81, s77, s81")
        a("s_lshr_b32 s82, s80, 2\ns_lshl_b32 s82, s82, 4\ns_and_b32 s80, s80, 3\ns_add_u32 s82, s82, s80\ns_add_u32 s82, s82, s78\ns_mul_i32 s82, s82, 51200")
        a("s_mul_i32 s83, s81, 5120\ns_add_u32 s82, s82, s83\ns_add_u32 s82, s82, s79")
        a("s_sub_u32 s83, s81, 3\ns_cmp_lt_u32 s83, 3\ns_cselect_b32 s83, 10240, 0\ns_add_u32 s82, s82, s83")
        a("s_sub_u32 s83, s81, 6\ns_cmp_lt_u32 s83, 2\ns_cselect_b32 s83, 15360, 0\ns_sub_u32 s82, s82, s83")
        o = 152 + 4*(g & 1); r = CR+4*g
        a(f"v_perm_b32 v{o}, v{r+2}, v{r}, s84\nv_perm_b32 v{o+1}, v{r+2}, v{r}, s85\nv_perm_b32 v{o+2}, v{r+3}, v{r+1}, s84\nv_perm_b32 v{o+3}, v{r+3}, v{r+1}, s85")
        a(f"buffer_store_dwordx4 v[{o}:{o+3}], v2, {S(SRD_WS)}, s82 offen sc1")
        a("s_add_u32 s77, s77, 1")
    a(f"{lb}:")

def crep_finish2(a):
    for blk in range(2):
        lb = a.lab("L_NOREP3")
        a(f"s_lshr_b32 s75, s2, 1\ns_add_u32 s75, s75, {128*blk}")
        if blk: a(f"s_cmp_ge_u32 s75, 200\ns_cbranch_scc1 {lb}")
        a("s_mul_i32 s76, s75, 6554\ns_lshr_b32 s76, s76, 16\ns_mul_i32 s77, s76, 10\ns_sub_u32 s77, s75, s77")
        a(f"v_and_b32 v2, 31, v0\nv_and_b32 v3, 7, v0\nv_lshlrev_b32 v3, 4, v3\nv_lshl_add_u32 v2, v2, 7, v3\nv_lshrrev_b32 v3, 5, v0\nv_lshl_add_u32 v2, v3, 3, v2")
        a(f"v_add_u32 v2, {L_CRS + 8192*blk}, v2\ns_lshl_b32 s78, s{sW}, 4\nv_xor_b32 v3, s78, v2")
        r = CR + 4*blk
        a(f"ds_read_b64 v[{r}:{r+1}], v3\nds_read_b64 v[{r+2}:{r+3}], v3 offset:4096")
        a("s_mul_i32 s78, s76, 52\ns_lshr_b32 s78, s78, 8\ns_mul_i32 s79, s78, 5\ns_sub_u32 s79, s76, s79")
        a(f"s_lshl_b32 s78, s78, 2\ns_lshl_b32 s79, s79, 10\ns_add_u32 s79, s79, {WS_CREP}")
        a(f"s_lshl_b32 s77, s77, 3\ns_add_u32 s77, s77, s{sW}")
        a("s_mov_b32 s84, 0x05040100\ns_mov_b32 s85, 0x07060302\nv_lshlrev_b32 v2, 4, v0")
        a("s_mul_i32 s80, s77, 6554\ns_lshr_b32 s80, s80, 16\ns_mul_i32 s81, s80, 10\ns_sub_u32 s81, s77, s81")
        a("s_lshr_b32 s82, s80, 2\ns_lshl_b32 s82, s82, 4\ns_and_b32 s80, s80, 3\ns_add_u32 s82, s82, s80\ns_add_u32 s82, s82, s78\ns_mul_i32 s82, s82, 51200")
        a("s_mul_i32 s83, s81, 5120\ns_add_u32 s82, s82, s83\ns_add_u32 s82, s82, s79")
        a("s_sub_u32 s83, s81, 3\ns_cmp_lt_u32 s83, 3\ns_cselect_b32 s83, 10240, 0\ns_add_u32 s82, s82, s83")
        a("s_sub_u32 s83, s81, 6\ns_cmp_lt_u32 s83, 2\ns_cselect_b32 s83, 15360, 0\ns_sub_u32 s82, s82, s83")
        o = 152 + 4*blk
        a("s_waitcnt lgkmcnt(0)")
        a(f"v_perm_b32 v{o}, v{r+2}, v{r}, s84\nv_perm_b32 v{o+1}, v{r+2}, v{r}, s85\nv_perm_b32 v{o+2}, v{r+3}, v{r+1}, s84\nv_perm_b32 v{o+3}, v{r+3}, v{r+1}, s85")
        a(f"buffer_store_dwordx4 v[{o}:{o+3}], v2, {S(SRD_WS)}, s82 offen sc1")
        a(f"{lb}:")

def touch_p1(a, G):
    if not OPT.touch: return 0
    n = 0
    offs = [0] if OPT.touch == 1 else [0, 64]
    a(f"s_lshr_b32 s70, s{sR}, 2\ns_lshl_b32 s70, s70, 9\ns_lshr_b32 s71, s2, 3\ns_lshl_b32 s72, s71, 4\ns_add_u32 s70, s70, s72\ns_mul_i32 s70, s70, 1280")
    a(f"s_add_u32 s72, s{sW}, 2\ns_lshl_b32 s72, s72, 7\ns_add_u32 s70, s70, s72")
    a("v_and_b32 v108, 15, v0\nv_mul_u32_u24 v108, 1280, v108")
    for o in offs:
        a(f"buffer_load_dword v110, v108, {S(SRD_X)}, s70 offen offset:{o}"); n += 1
    if G:
        a(f"s_add_u32 s72, s{sW}, 2\ns_lshl_b32 s72, s72, 6\ns_add_u32 s72, s72, s71\ns_mul_i32 s72, s72, 3072")
        a("v_min_u32 v108, 47, v0\nv_cmp_le_u32 vcc, 24, v108\nv_cndmask_b32 v109, 0, 1, vcc\nv_mul_u32_u24 v109, 95232, v109\nv_lshl_add_u32 v108, v108, 7, v109")
        for o in offs:
            a(f"buffer_load_dword v110, v108, {S(SRD_C)}, s72 offen offset:{o}"); n += 1
    else:
        a(f"s_mul_i32 s72, s71, {20*1280}\ns_add_u32 s70, s{sW}, 2\ns_lshl_b32 s70, s70, 7\ns_add_u32 s72, s72, s70")
        a("v_and_b32 v108, 31, v0\nv_min_u32 v108, 19, v108\nv_mul_u32_u24 v108, 1280, v108")
        a(f"s_mov_b32 s{SRD_A}, s{pBRE}\ns_mov_b32 s{SRD_A+1}, s{pBRE+1}\ns_mov_b32 s{SRD_B}, s{pBIM}\ns_mov_b32 s{SRD_B+1}, s{pBIM+1}")
        a(f"s_mov_b32 s{SRD_A+2}, {SZ_BC}\ns_mov_b32 s{SRD_A+3}, 0x20000\ns_mov_b32 s{SRD_B+2}, {SZ_BC}\ns_mov_b32 s{SRD_B+3}, 0x20000")
        for o in offs:
            a(f"buffer_load_dword v110, v108, {S(SRD_A)}, s72 offen offset:{o}\nbuffer_load_dword v111, v108, {S(SRD_B)}, s72 offen offset:{o}"); n += 2
    return n

def side_G(a):
    srd(a, SRD_C, pW1, SZ_W1)
    a(f"s_mul_i32 s70, s{sR}, 40\ns_mul_i32 s71, s{sW}, 5\ns_add_u32 s70, s70, s71\ns_mul_i32 s70, s70, 3072\ns_mul_i32 s71, s{sCG}, 384\ns_add_u32 s70, s70, s71")
    a("v_lshlrev_b32 v18, 3, v0")
    a("s_mov_b32 exec_lo, -1\ns_mov_b32 exec_hi, 0xffff")
    for i in range(5):
        a(f"buffer_load_dwordx2 v[{24+2*i}:{25+2*i}], v18, {S(SRD_C)}, s70 offen")
        if i < 4: a("s_add_u32 s70, s70, 3072")
    a("s_mov_b64 exec, -1")
    nt = 0
    if not OPT.tlate & 1: nt = touch_p1(a, True)
    a(f"s_waitcnt vmcnt({5+nt})")
    a(f"v_readfirstlane_b32 s{sNONCE}, v3")
    a(f"s_mul_i32 s{sNONCE}, s{sNONCE}, 1664525\ns_add_u32 s{sNONCE}, s{sNONCE}, 1013904223")
    stats_finish(a)
    if OPT.tlate & 1: nt = touch_p1(a, True)
    a(f"s_waitcnt vmcnt({1+nt})")
    a("s_mov_b32 s70, 0x00003f80\ns_mov_b32 s71, 0x3f800000")
    a("v_mov_b32 v36, 0\nv_mov_b32 v37, 0\nv_mov_b32 v38, 0\nv_mov_b32 v39, 0")
    for i in range(5):
        a(f"v_dot2_f32_bf16 v36, v{24+2*i}, s70, v36\nv_dot2_f32_bf16 v37, v{24+2*i}, s71, v37")
        a(f"v_dot2_f32_bf16 v38, v{25+2*i}, s70, v38\nv_dot2_f32_bf16 v39, v{25+2*i}, s71, v39")
    xcc_publish(a)
    a(f"s_mul_i32 s70, s{sW}, 768\ns_add_u32 s70, s70, {L_CSST}\nv_add_u32 v18, s70, v1")
    a("s_mov_b32 exec_lo, -1\ns_mov_b32 exec_hi, 0xffff")
    a("ds_write_b128 v18, v[36:39]")
    a("s_mov_b64 exec, -1")
    if not OPT.nocrep: crep_issue(a)
    else: a('s_mov_b32 s75, 200')

def css_row(a, rowreg, vb, tag):
    a(f"s_cmp_ge_u32 s{rowreg}, 80\ns_cselect_b32 s70, 1, 0\ns_cselect_b64 s[{SRD_C}:{SRD_C+1}], s[{pBIM}:{pBIM+1}], s[{pBRE}:{pBRE+1}]")
    a(f"s_mov_b32 s{SRD_C+2}, {SZ_BC}\ns_mov_b32 s{SRD_C+3}, 0x20000")
    a(f"s_mul_i32 s71, s70, 80\ns_sub_u32 s{rowreg}, s{rowreg}, s71\ns_mul_i32 s71, s{sCG}, 80\ns_add_u32 s{rowreg}, s{rowreg}, s71")
    a(f"s_mul_i32 s71, s{rowreg}, 1280")
    row_load(a, vb, SRD_C, 71)
    a(f"s_mul_i32 s70, s70, 640\ns_add_u32 s{rowreg}, s{rowreg}, s70")
def css_fin(a, rowreg, vb, dst):
    a(f"v_readlane_b32 s71, v{dst}, 63")
    a(f"s_lshl_b32 s72, s{rowreg}, 3\ns_add_u32 s72, s72, {WS_CSS}")
    a(f"v_mov_b32 v{dst}, s71\nv_mov_b32 v{dst+1}, s{sNONCE}")
    a("s_mov_b64 exec, 1")
    a(f"buffer_store_dwordx2 v[{dst}:{dst+1}], off, {S(SRD_WS)}, s72 sc1")
    a("s_mov_b64 exec, -1")

KC=96
def side_S(a):
    a(f"s_mul_i32 s86, s{sR}, 10\ns_add_u32 s86, s86, s{sW}")
    css_row(a, 86, 24, "a")
    a(f"s_cmp_ge_u32 s{sW}, 2\ns_cbranch_scc1 L_S_NOROW2")
    a(f"s_mul_i32 s87, s{sR}, 10\ns_add_u32 s87, s87, s{sW}\ns_add_u32 s87, s87, 8")
    css_row(a, 87, 30, "b")
    a("L_S_NOROW2:")
    nt = 0
    if not OPT.tlate & 2: nt = touch_p1(a, False)
    a(f"s_waitcnt vmcnt({nt})")
    a(f"v_readfirstlane_b32 s{sNONCE}, v3")
    a(f"s_mul_i32 s{sNONCE}, s{sNONCE}, 1664525\ns_add_u32 s{sNONCE}, s{sNONCE}, 1013904223")
    stats_finish(a)
    if OPT.tlate & 2: nt = touch_p1(a, False)
    a(f"s_mov_b32 s70, {ONES}")
    row_sum(a, 24, 14); wave_reduce(a, [14]); css_fin(a, 86, 24, 14)
    a(f"s_cmp_ge_u32 s{sW}, 2\ns_cbranch_scc1 L_S_NOROW2b")
    row_sum(a, 30, 14); wave_reduce(a, [14]); css_fin(a, 87, 30, 14)
    a("L_S_NOROW2b:")
    xcc_publish(a)

def lam_issue(a):
    a(f"v_lshrrev_b32 v13, 5, v42\nv_and_b32 v14, 31, v42\nv_lshrrev_b32 v14, 1, v14\nv_lshl_add_u32 v13, v13, 4, v14\ns_mul_i32 s73, s{sCG}, 80\nv_add_u32 v13, s73, v13\nv_lshlrev_b32 v13, 1, v13")
    a(f"global_load_ushort v44, v13, s[{pLRE}:{pLRE+1}]\nglobal_load_ushort v45, v13, s[{pLIM}:{pLIM+1}]\nglobal_load_ushort v46, v13, s[{pLDT}:{pLDT+1}]")
def lam_finish(a):
    lre, lim, ldt = 44, 45, 46
    ar, kA, k1, k2 = 48, 49, 50, 51
    a("v_and_b32 v82, 1, v42\nv_lshlrev_b32 v82, 31, v82\nv_or_b32 v82, 0x3f800000, v82")
    a(f"v_lshlrev_b32 v{lre}, 16, v{lre}\nv_lshlrev_b32 v{lim}, 16, v{lim}\nv_lshlrev_b32 v{ldt}, 16, v{ldt}")
    a(f"v_mul_f32 v{ldt}, 0x3fb8aa3b, v{ldt}\nv_exp_f32 v{ldt}, v{ldt}")
    a(f"v_cvt_pk_bf16_f32 v{ldt}, v{ldt}, v{ldt}\nv_lshlrev_b32 v{ldt}, 16, v{ldt}")
    a(f"v_mul_f32 v52, v{ldt}, v{lre}\nv_mul_f32 v53, v{ldt}, v{lim}")
    a("v_mul_f32 v52, 0x3fb8aa3b, v52\nv_exp_f32 v52, v52")
    a("v_mul_f32 v53, 0.15915494, v53\nv_rndne_f32 v54, v53\nv_sub_f32 v53, v53, v54")
    a("v_cos_f32 v54, v53\nv_sin_f32 v55, v53")
    a(f"v_mul_f32 v{ar}, v52, v54\nv_mul_f32 v55, v52, v55")
    a(f"v_add_f32 v54, -1.0, v{ar}")
    a(f"v_mul_f32 v56, v{lre}, v{lre}\nv_fmac_f32 v56, v{lim}, v{lim}\nv_rcp_f32 v56, v56")
    a(f"v_mul_f32 v52, v54, v{lre}\nv_fmac_f32 v52, v55, v{lim}")
    a(f"v_mul_f32 v53, v55, v{lre}\nv_fma_f32 v53, -v54, v{lim}, v53")
    a("v_add_f32 v56, v56, v56")
    a("v_mul_f32 v52, v52, v56\nv_mul_f32 v53, v53, v56")
    a(f"v_mul_f32 v{k1}, v52, v82\nv_sub_f32 v{k2}, 0, v53\nv_mul_f32 v{kA}, v55, v82")
    a(f"v_lshlrev_b32 v13, 4, v42\nv_add_u32 v13, {L_KC}, v13\nds_write_b128 v13, v[48:51]")
    a(f"v_mov_b32 v80, v{ar}\nv_mov_b32 v81, v55")
    for _ in range(4):
        a("v_mul_f32 v54, v81, v81\nv_mul_f32 v56, v80, v81\nv_fma_f32 v80, v80, v80, -v54\nv_add_f32 v81, v56, v56")

def xcc_publish(a):
    lb = a.lab("L_XCC")
    a(f"s_cmp_lg_u32 s{sW}, 0\ns_cbranch_scc1 {lb}")
    a(f"s_getreg_b32 s70, hwreg(HW_REG_XCC_ID, 0, 4)\ns_lshl_b32 s71, s2, 3\ns_add_u32 s71, s71, {WS_XCC}")
    a(f"v_mov_b32 v14, s70\nv_mov_b32 v15, s{sNONCE}\ns_mov_b64 exec, 1\nbuffer_store_dwordx2 v[14:15], off, {S(SRD_WS)}, s71 sc1\ns_mov_b64 exec, -1")
    a(f"{lb}:")

def colsum_reduce_G(a):
    a(f"s_mul_i32 s70, s{sW}, 96\ns_add_u32 s70, s70, {L_CSST}\nv_lshl_add_u32 v12, v0, 2, s70")
    a("s_mov_b32 exec_lo, 0xffffff\ns_mov_b32 exec_hi, 0")
    for w in range(8): a(f"ds_read_b32 v{108+w}, v12 offset:{768*w}")
    a(f"s_mul_i32 s70, s{sR}, 12288\ns_mul_i32 s71, s{sCG}, 1536\ns_add_u32 s70, s70, s71\ns_mul_i32 s71, s{sW}, 192\ns_add_u32 s70, s70, s71\ns_add_u32 s70, s70, {WS_CSG}")
    a(f"v_lshlrev_b32 v12, 3, v0\nv_mov_b32 v117, s{sNONCE}")
    a("s_waitcnt lgkmcnt(0)")
    a("v_add_f32 v108, v108, v109\nv_add_f32 v110, v110, v111\nv_add_f32 v112, v112, v113\nv_add_f32 v114, v114, v115\nv_add_f32 v108, v108, v110\nv_add_f32 v112, v112, v114\nv_add_f32 v116, v108, v112")
    a(f"buffer_store_dwordx2 v[116:117], v12, {S(SRD_WS)}, s70 offen sc1")
    a("s_mov_b64 exec, -1")

def tlb_touch(a):
    if not OPT.tlb: return
    lb = a.lab("L_TLB")
    a(f"s_cmp_lg_u32 s{sW}, 7\ns_cbranch_scc1 {lb}")
    srd(a, SRD_O, pOUT, SZ_OUT)
    a(f"v_lshlrev_b32 v12, 19, v0\nbuffer_load_dword v166, v12, {S(SRD_WS)}, 0 offen")
    a(f"v_min_u32 v12, 39, v0\nv_lshlrev_b32 v12, 17, v12\nbuffer_load_dword v167, v12, {S(SRD_O)}, 0 offen")
    if OPT.tlb >= 2:
        srd(a, SRD_O, pW2, SZ_W2)
        a(f"v_min_u32 v12, 14, v0\nv_lshlrev_b32 v12, 17, v12\nbuffer_load_dword v165, v12, {S(SRD_O)}, 0 offen")
    a(f"{lb}:")
```
